```python
import torch

def _softmax(x, axis=-1):
    return torch.softmax(x, dim=axis)

def _gelu(x):
    return torch.nn.functional.gelu(x, approximate='tanh')

def _silu(x):
    return torch.nn.functional.silu(x)

def _sigmoid(x):
    return torch.sigmoid(x)

def _layernorm(x, axis=-1, eps=1e-05):
    m = x.mean(dim=axis, keepdim=True)
    v = x.var(dim=axis, keepdim=True, unbiased=False)
    return (x - m) / torch.sqrt(v + eps)

def _scatter_add(tgt, idx, src, axis=0):
    return tgt.clone().index_add_(axis, idx, src)

def _segment_sum(src, seg, n):
    out = torch.zeros((n,) + src.shape[1:], dtype=src.dtype)
    return out.index_add_(0, seg, src)

def _pad(x, pw):
    flat = tuple((v for pair in reversed(pw) for v in pair))
    return torch.nn.functional.pad(x, flat)
kernel_name = 'adaLN_cond__sliding_block_cached__glu_gated_reglu__prompt'

def setup_inputs():

    _w = lambda a: (lambda t: t.to(torch.bfloat16) if t.is_floating_point() else t)(torch.as_tensor(a))

    def _A_setup():
        B, Sq, D = (1, 2048, 640)
        Hq, Hkv, Sk, Dh = (32, 32, 2048, 192)
        assert Hq % Hkv == 0, (Hq, Hkv)
        return {'x': _w((lambda *s: torch.randn(*s, dtype=torch.bfloat16) * 0.05)(B, Sq, D)), 'k_cache': _w((lambda *s: torch.randn(*s, dtype=torch.bfloat16) * 1.6)(B, Hkv, Sk, Dh)), 'v_cache': _w((lambda *s: torch.randn(*s, dtype=torch.bfloat16) * 0.8)(B, Hkv, Sk, Dh)), 'wq': _w((lambda *s: torch.randn(*s, dtype=torch.bfloat16) * 1.6)(D, Hq * Dh) * D ** (-0.5)), 'wo': _w((lambda *s: torch.randn(*s, dtype=torch.bfloat16) * 0.8)(Hq * Dh, D) * (Hq * Dh) ** (-0.5))}
    _A_in = _A_setup()

    def _B_setup():
        B, S, D, F = (1, 2048, 640, 1536)
        return {'x': _w((lambda *s: torch.randn(*s, dtype=torch.bfloat16) * 0.05)(B, S, D)), 'W_gate': _w((lambda *s: torch.randn(*s, dtype=torch.bfloat16) * 0.4)(D, F) * (2.0 / D) ** 0.5), 'W_up': _w((lambda *s: torch.randn(*s, dtype=torch.bfloat16) * 0.4)(D, F) * (2.0 / D) ** 0.5), 'W_down': _w((lambda *s: torch.randn(*s, dtype=torch.bfloat16) * 0.4)(F, D) * (1.0 / F) ** 0.5)}
    _B_in = _B_setup()
    return {'A_x': _A_in['x'], 'A_k_cache': _A_in['k_cache'], 'A_v_cache': _A_in['v_cache'], 'A_wq': _A_in['wq'], 'A_wo': _A_in['wo'], 'B_x': _B_in['x'], 'B_W_gate': _B_in['W_gate'], 'B_W_up': _B_in['W_up'], 'B_W_down': _B_in['W_down'], 'c': _w((lambda *s: torch.randn(*s, dtype=torch.bfloat16) * 0.2)(1, 640) * 8.0), 'w_mod': _w((lambda *s: torch.randn(*s, dtype=torch.bfloat16) * 0.2)(640, 6 * 640) * 640 ** (-0.5) * 8.0)}

def reference(A_x, A_k_cache, A_v_cache, A_wq, A_wo, B_x, B_W_gate, B_W_up, B_W_down, c, w_mod):

    def _A_ref(x, k_cache, v_cache, wq, wo):
        B, Sq, D = x.shape
        Hq, Dh = (32, 192)
        Hkv, Sk = (k_cache.shape[1], k_cache.shape[2])
        W = min(4096, max(256, Sk // 4))
        rep = Hq // Hkv
        q = (lambda x, *d: x.permute(*d))((x @ wq).reshape(B, Sq, Hq, Dh), 0, 2, 1, 3)
        k = (lambda x, n, axis: torch.repeat_interleave(x, n, dim=axis))(k_cache[:, :, Sk - W:, :], rep, axis=1)
        v = (lambda x, n, axis: torch.repeat_interleave(x, n, dim=axis))(v_cache[:, :, Sk - W:, :], rep, axis=1)
        scores = torch.einsum('bhqd,bhkd->bhqk', q, k) * Dh ** (-0.5)
        p = _softmax(scores, axis=-1)
        o = torch.einsum('bhqk,bhkd->bhqd', p, v)
        return (lambda x, *d: x.permute(*d))(o, 0, 2, 1, 3).reshape(B, Sq, Hq * Dh) @ wo

    def _B_ref(x, W_gate, W_up, W_down):
        gate = torch.einsum('bsd,df->bsf', x, W_gate)
        up = torch.einsum('bsd,df->bsf', x, W_up)
        gate = gate * (lambda x, dt: x.to(dt))(gate > 0, gate.dtype)
        h = gate * up
        return torch.einsum('bsf,fd->bsd', h, W_down)
    x = A_x
    mod = (_silu(c) @ w_mod).reshape(c.shape[0], 6, 1, -1)
    sa, ca, ga, sb, cb, gb = (mod[:, 0].clone(), mod[:, 1].clone(), mod[:, 2].clone(), mod[:, 3].clone(), mod[:, 4].clone(), mod[:, 5].clone())
    h = _layernorm(x, axis=-1) * (1 + ca) + sa
    x = x + ga * _A_ref(h, A_k_cache, A_v_cache, A_wq, A_wo)
    h = _layernorm(x, axis=-1) * (1 + cb) + sb
    x = x + gb * _B_ref(h, B_W_gate, B_W_up, B_W_down)
    return x
```

```python
import re

def R(p, i, n=1):
    return f"{p}{i}" if n == 1 else f"{p}[{i}:{i+n-1}]"
def v(i, n=1): return R("v", i, n)
def a(i, n=1): return R("a", i, n)
def s(i, n=1): return R("s", i, n)

_rng = re.compile(r"^([vas])\[(\d+):(\d+)\]$")
_one = re.compile(r"^([vas])(\d+)$")
def regs(x):
    x = x.strip()
    if x.startswith("-"): x = x[1:]
    if x.startswith("abs(") : x = x[4:-1]
    m = _rng.match(x)
    if m: return [f"{m.group(1)}{i}" for i in range(int(m.group(2)), int(m.group(3)) + 1)]
    m = _one.match(x)
    if m: return [x]
    if x in ("vcc",): return ["vcc"]
    if x in ("m0", "exec", "scc"): return [x]
    return []

TRANS = ("v_exp_f32", "v_log_f32", "v_rcp_f32", "v_rsq_f32", "v_sqrt_f32", "v_sin_f32", "v_cos_f32")

class Ins:
    __slots__ = ("op", "ops", "mods", "kind", "defs", "uses", "tag", "wait_vm", "wait_lgkm", "text", "cnt", "idx")
    def __init__(self, op, ops=(), mods="", kind=None, defs=None, uses=None, tag=None):
        self.op, self.ops, self.mods = op, list(ops), mods
        self.tag = tag
        self.wait_vm = None; self.wait_lgkm = None; self.text = None
        k = kind
        if k is None:
            if op.startswith("v_mfma"): k = "mfma"
            elif op.startswith(TRANS): k = "trans"
            elif op.startswith("v_permlane"): k = "perm"
            elif op.startswith("v_"): k = "valu"
            elif op.startswith("ds_"): k = "ds"
            elif op.startswith(("buffer_", "global_")): k = "vmem"
            elif op.startswith("s_load"): k = "smem"
            elif op in ("s_waitcnt",): k = "wait"
            elif op in ("s_barrier",): k = "barrier"
            elif op in ("s_nop",): k = "nop"
            elif op.startswith(("s_cbranch", "s_branch", "s_endpgm", "s_setpc")): k = "branch"
            elif op.startswith("s_"): k = "salu"
            else: k = "other"
        self.kind = k
        if defs is None or uses is None:
            d, u = self._du()
            if defs is None: defs = d
            if uses is None: uses = u
        self.defs, self.uses = defs, uses
    def _du(self):
        op, o, k = self.op, self.ops, self.kind
        rs = [regs(x) for x in o]
        if k == "mfma": return rs[0], rs[1] + rs[2] + rs[3]
        if k in ("valu", "trans"):
            if op.startswith("v_cmp"):
                d = rs[0] + (["exec"] if op.startswith("v_cmpx") else [])
                return d, sum(rs[1:], [])
            if op.startswith("v_readfirstlane") or op.startswith("v_readlane"): return rs[0], sum(rs[1:], [])
            if op.startswith(("v_fmac", "v_pk_fmac", "v_dot2c")): return rs[0], sum(rs, [])
            if op.startswith(("v_add_co", "v_sub_co", "v_addc_co", "v_subb_co")): return rs[0] + rs[1], sum(rs[2:], [])
            if op.startswith("v_cndmask") and len(o) == 3: return rs[0], rs[1] + rs[2] + ["vcc"]
            return rs[0], sum(rs[1:], [])
        if k == "perm": return rs[0] + rs[1], rs[0] + rs[1]
        if k == "ds":
            if op.startswith("ds_read") or op.startswith("ds_bpermute") or op.startswith("ds_swizzle"): return rs[0], sum(rs[1:], [])
            return [], sum(rs, [])
        if k == "vmem":
            lds = " lds" in (" " + self.mods)
            if "load" in op:
                if lds: return [], sum(rs, []) + ["m0"]
                return rs[0], sum(rs[1:], [])
            if "atomic" in op:
                return (rs[0] if "sc0" in self.mods else []), sum(rs, [])
            return [], sum(rs, [])
        if k == "smem": return rs[0], rs[1]
        if k == "salu":
            if op.startswith("s_cmp"): return ["scc"], sum(rs, [])
            if op.startswith(("s_cselect",)): return rs[0], sum(rs[1:], []) + ["scc"]
            if "saveexec" in op: return rs[0] + ["exec", "scc"], sum(rs[1:], []) + ["exec"]
            if op in ("s_setprio", "s_sleep"): return [], []
            d = rs[0]
            if op.startswith(("s_add", "s_sub", "s_lshl", "s_lshr", "s_and", "s_or", "s_xor", "s_ashr", "s_andn2", "s_not", "s_min", "s_max")): d = d + ["scc"]
            u = sum(rs[1:], [])
            if op.startswith(("s_addc", "s_subb")): u = u + ["scc"]
            if op.startswith(("s_addk", "s_mulk")): u = u + rs[0]
            return d, u
        return [], []
    def __str__(self):
        if self.text is not None: return self.text
        t = self.op
        if self.ops: t += " " + ", ".join(str(x) for x in self.ops)
        if self.mods: t += " " + self.mods
        return t

def vm_inc(i):
    return 1 if i.kind == "vmem" else 0
def lgkm_inc(i):
    if i.kind == "ds": return 1
    if i.kind == "smem": return 1 if i.op == "s_load_dword" else 2
    return 0

class Wait(Ins):
    def __init__(self, vm=None, lgkm=None):
        super().__init__("s_waitcnt", [], kind="wait", defs=[], uses=[])
        self.wait_vm, self.wait_lgkm = vm, lgkm

class Label(Ins):
    def __init__(self, name):
        super().__init__(name, [], kind="label", defs=[], uses=[]); self.text = name + ":"

class Raw(Ins):
    def __init__(self, text):
        super().__init__("raw", [], kind="raw", defs=[], uses=[]); self.text = text

class Prog:
    def __init__(self): self.ins = []
    def add(self, x):
        if isinstance(x, (list, tuple)):
            for y in x: self.add(y)
            return None
        self.ins.append(x); return x
    def I(self, op, *ops, mods="", **kw):
        return self.add(Ins(op, ops, mods, **kw))
    def label(self, n): return self.add(Label(n))
    def raw(self, t): return self.add(Raw(t))
    def wait(self, vm=None, lgkm=None): return self.add(Wait(vm, lgkm))
    def nop(self, n):
        while n > 0:
            k = min(n, 16); self.I("s_nop", str(k - 1)); n -= k

def resolve_waits(seq):
    vm_list, lg_list = [], []
    pos_vm, pos_lg = {}, {}
    for i in seq:
        if isinstance(i, Wait):
            parts = []
            if i.wait_vm is not None:
                if i.wait_vm == "all": n = 0
                else:
                    last = max(pos_vm[id(x)] for x in i.wait_vm) if i.wait_vm else -1
                    n = len(vm_list) - 1 - last
                if n < 63 or i.wait_vm == "all": parts.append(f"vmcnt({min(n,63)})")
                else: parts.append("vmcnt(63)") if n == 63 else None
                i.cnt = (n,)
            if i.wait_lgkm is not None:
                if i.wait_lgkm == "all": n = 0
                else:
                    last = max(pos_lg[id(x)] for x in i.wait_lgkm) if i.wait_lgkm else -1
                    n = len(lg_list) - 1 - last
                n = min(n, 15)
                parts.append(f"lgkmcnt({n})")
            i.text = "s_waitcnt " + " ".join(parts) if parts else "s_nop 0"
        else:
            if vm_inc(i): pos_vm[id(i)] = len(vm_list); vm_list.append(i)
            if lgkm_inc(i): pos_lg[id(i)] = len(lg_list); lg_list.append(i)

def _parse_wait(text):
    vm = re.search(r"vmcnt\((\d+)\)", text); lg = re.search(r"lgkmcnt\((\d+)\)", text)
    return (int(vm.group(1)) if vm else None, int(lg.group(1)) if lg else None)

def check(seq, name="", mfma_passes=lambda i: 4 if "16x16x32" in i.op else 8, verbose=True):
    errs = []
    pend_vm, pend_lg = [], []
    last = {}
    lastC = {}
    lastStore = {}
    n = 0
    def states(i):
        if i.kind == "nop": return int(i.ops[0]) + 1
        if i.kind in ("label", "raw"): return 0
        return 1
    for i in seq:
        if i.kind in ("label", "raw"): continue
        if i.kind == "wait":
            vm, lg = _parse_wait(str(i))
            if vm is not None:
                while len(pend_vm) > vm: pend_vm.pop(0)
            if lg is not None:
                while len(pend_lg) > lg: pend_lg.pop(0)
            n += 1; continue
        touched = set(i.defs) | set(i.uses)
        for p in pend_vm + pend_lg:
            if p is i: continue
            hit = set(p.defs) & touched
            if hit: errs.append(f"{name}: '{i}' touches {sorted(hit)[:4]} pending from '{p}'")
        def dist(r): return n - last[r][0] - 1
        for r in i.uses:
            if r in last:
                wi = last[r][1]; d = dist(r)
                if wi.kind in ("valu", "trans", "perm") and r[0] in "va":
                    if i.kind == "mfma" and d < 2: errs.append(f"{name}: VALU->MFMA {r} d={d}: '{wi}' -> '{i}'")
                    if i.kind == "perm" and d < 2: errs.append(f"{name}: VALU->perm {r} d={d}: '{wi}' -> '{i}'")
                    if i.op.startswith(("v_readfirstlane", "v_readlane")) and d < 1: errs.append(f"{name}: VALU->readlane {r}: '{wi}' -> '{i}'")
                    if "dpp" in i.op or "row_" in i.mods:
                        if d < 2: errs.append(f"{name}: VALU->DPP {r} d={d}: '{wi}' -> '{i}'")
                if wi.kind == "trans" and i.kind in ("valu", "perm", "mfma") and d < 1: errs.append(f"{name}: trans->VALU {r}: '{wi}' -> '{i}'")
                if wi.kind == "mfma":
                    p = mfma_passes(wi); need = {2: 5, 4: 8, 8: 12, 16: 20}[p]
                    if i.kind == "mfma":
                        isC = r in regs(i.ops[3])
                        exact = isC and i.ops[3] == wi.ops[0] and wi.op == i.op
                        if not exact:
                            nd = ({2: 4, 4: 6, 8: 10, 16: 18}[p] if (isC and r not in regs(i.ops[1]) + regs(i.ops[2])) else need)
                            if d < nd: errs.append(f"{name}: MFMA->MFMA {r} d={d}<{nd}: '{wi}' -> '{i}'")
                    elif d < need: errs.append(f"{name}: MFMA->read {r} d={d}<{need}: '{wi}' -> '{i}'")
                if wi.kind in ("valu", "trans") and (r[0] == "s" or r == "vcc"):
                    if i.kind == "vmem" and d < 5: errs.append(f"{name}: VALU sgpr->VMEM {r} d={d}: '{wi}' -> '{i}'")
                    if i.kind in ("valu", "trans") and d < 2: errs.append(f"{name}: VALU sgpr->VALU {r} d={d}: '{wi}' -> '{i}'")
                if r == "m0" and wi.kind == "salu" and i.kind == "vmem" and d < 1: errs.append(f"{name}: M0->DMA d={d}: '{wi}' -> '{i}'")
        for r in i.defs:
            if r in last and last[r][1].kind == "mfma" and i.kind != "mfma":
                p = mfma_passes(last[r][1]); need = {2: 5, 4: 8, 8: 12, 16: 20}[p]
                if dist(r) < need: errs.append(f"{name}: MFMA->WAW {r} d={dist(r)}: '{last[r][1]}' -> '{i}'")
            if r in lastC and i.kind in ("valu", "trans", "perm"):
                idx, p = lastC[r]; need = {2: 1, 4: 3, 8: 7, 16: 15}[p]
                if n - idx - 1 < need: errs.append(f"{name}: MFMA SrcC WAR {r}: '{i}'")
            if r in lastStore and i.kind in ("valu", "trans", "perm", "mfma"):
                if n - lastStore[r] - 1 < 2: errs.append(f"{name}: store data WAR {r}: '{i}'")
        if i.kind == "mfma":
            for r in regs(i.ops[3]): lastC[r] = (n, mfma_passes(i))
        if i.kind == "vmem" and "store" in i.op and ("x4" in i.op or "x3" in i.op):
            for r in regs(i.ops[0]): lastStore[r] = n
        for r in i.defs: last[r] = (n, i)
        if vm_inc(i): pend_vm.append(i)
        if i.kind in ("ds", "smem"): pend_lg.append(i)
        n += states(i) - 1 + 1
    if verbose and errs:
        for e in errs[:40]: print("HAZARD", e)
        if len(errs) > 40: print(f"... {len(errs)-40} more")
    return errs

def kernel_header(P, name):
    P.raw(f".globl {name}"); P.raw(".p2align 8"); P.raw(f".type {name},@function"); P.raw(f"{name}:")

def kernel_desc(name, vgpr, agpr=0, sgpr=96):
    acc = (vgpr + 3) // 4 * 4
    total = acc + agpr if agpr else vgpr
    return "\n".join([
        '.section .rodata,"a"', ".p2align 6", f".amdhsa_kernel {name}",
        f"  .amdhsa_next_free_vgpr {total}", f"  .amdhsa_next_free_sgpr {sgpr}", f"  .amdhsa_accum_offset {acc}",
        "  .amdhsa_group_segment_fixed_size 0", "  .amdhsa_kernarg_size 112", "  .amdhsa_user_sgpr_count 2",
        "  .amdhsa_user_sgpr_kernarg_segment_ptr 1", "  .amdhsa_system_sgpr_workgroup_id_x 1",
        ".end_amdhsa_kernel", ".text"])
```

```python
from asm import *

KA = dict(x=0, k=8, vv=16, wq=24, wo=32, bx=40, wg=48, wu=56, wd=64, c=72, wmod=80, out=88, dbg=96, ws=104)
WS_MOD  = 0x0000000
WS_H1   = 0x0100000
WS_O    = 0x0400000
WS_PART = 0x2000000
WS_X1   = 0x3400000
WS_H2   = 0x3800000
WS_HH   = 0x3C00000
SZ_MOD = 4*3840*4; SZ_H1 = 2048*640*2; SZ_O = 2048*6144*2; SZ_PART = 4*2048*640*4; SZ_X1 = 2048*640*2; SZ_H2 = SZ_H1; SZ_HH = 2048*1536*2

def srd_from_arg(P, d, src, size, off=0):
    if off:
        P.I("s_add_u32", s(d), s(src), hex(off)); P.I("s_addc_u32", s(d+1), s(src+1), "0")
    else:
        P.I("s_mov_b32", s(d), s(src)); P.I("s_mov_b32", s(d+1), s(src+1))
    P.I("s_mov_b32", s(d+2), hex(size)); P.I("s_mov_b32", s(d+3), "0x20000")

def load_ptrs(P, lst):
    for r, n in lst: P.I("s_load_dwordx2", s(r, 2), s(0, 2), str(KA[n]))
    P.wait(lgkm="all")

def guard(P, nwg, name):
    P.I("s_cmp_ge_u32", "s2", str(nwg)); P.I("s_cbranch_scc1", f"L_end_{name}")

def finish(P, name):
    P.label(f"L_end_{name}"); P.I("s_endpgm")

def red_g(P, x, t, op="v_add_f32"):
    P.I("v_mov_b32", t, x); P.nop(2); P.I("v_permlane32_swap_b32", x, t); P.nop(1); P.I(op, x, x, t)
    P.I("v_mov_b32", t, x); P.nop(2); P.I("v_permlane16_swap_b32", x, t); P.nop(1); P.I(op, x, x, t)

def round_bf16(P, dst, src, tmp=None):
    P.I("v_cvt_pk_bf16_f32", dst, src, src); P.I("v_lshlrev_b32", dst, "16", dst)

WS_PROF = 0x5000000
class Prof:
    def __init__(self, on, base=60): self.on, self.base, self.n = on, base, 0
    def stamp(self):
        if not self.on: return []
        r = self.base + 4*self.n; self.n += 1
        return [Ins("s_memtime", [s(r, 2)], kind="smem", defs=regs(s(r, 2)), uses=[]), Ins("s_memrealtime", [s(r+2, 2)], kind="smem", defs=regs(s(r+2, 2)), uses=[])]
    def store(self, ws_sreg, kidx, vtmp, lane16=None):
        if not self.on: return []
        o = [Wait(lgkm="all", vm="all")]
        o += [Ins("s_add_u32", ["s92", s(ws_sreg), hex(WS_PROF + kidx*65536)]), Ins("s_addc_u32", ["s93", s(ws_sreg+1), "0"]), Ins("s_mov_b32", ["s94", "65536"]), Ins("s_mov_b32", ["s95", "0x20000"])]
        o += [Ins("s_lshl_b32", ["s91", "s2", "6"]), Ins("v_mov_b32", [v(vtmp), "s91"])]
        for i in range(self.n):
            r = self.base + 4*i
            o += [Ins("v_mov_b32", [v(vtmp+1), s(r)]), Ins("v_mov_b32", [v(vtmp+2), s(r+2)]),
                  Ins("v_mov_b32", [v(vtmp+4), v(vtmp+1)]), Ins("v_mov_b32", [v(vtmp+5), v(vtmp+2)]),
                  Ins("buffer_store_dwordx2", [v(vtmp+4, 2), v(vtmp), "s[92:95]", "0"], f"offen offset:{8*i}"), Wait(vm="all")]
        return o
```

```python
from common import *
import math

NAME = "k2_kernel"
TILE = 12288
D = 5
NB = 8
NH = 6
LW = 7
DH = 5
BIAS = 2048

def QACC(T, G): return (T*4+G)*4
def QF(s_, G): return (s_*4+G)*4
def SREG(kt, G): return 96 + (kt*4+G)*4
def PREG(b, G): return 128 + b*16 + G*4
def NEGM(G): return 160 + 4*G
def LSUM(G): return 176 + G
TMP = 180
V_TRA, V_TRB, V_K, V_DW, V_DK, V_L16 = 192, 196, 200, 202, 205, 208
V_T2 = 209
def OACC(T, G): return (T*4+G)*4
def FBUF(F): return 192 + (F % NB)*4
def HBUF(ks, G): return (ks % NH)*16 + G*4
S_WQ, S_K, S_V, S_H1, S_O = 8, 12, 16, 20, 24
S_W, S_HEAD, S_QT, S_WB = 28, 29, 30, 31
S_OWQ, S_OK, S_OV, S_OH = 32, 33, 34, 35
S_CNT = 36

MF = "v_mfma_f32_16x16x32_bf16"

def tr_read(F, T, u, slot):
    base = V_TRA if slot < 4 else V_TRB
    off = (slot % 4)*TILE + u*6144 + (T >> 2)*128
    return Ins("ds_read_b64_tr_b16", [a(FBUF(F) + 2*u, 2), v(base + (T & 3))], f"offset:{off}")
def k_read(F, kt, s_, slot):
    off = (slot - 8)*TILE + kt*6144 + (s_ >> 1)*128
    return Ins("ds_read_b128", [a(FBUF(F), 4), v(V_K + (s_ & 1))], f"offset:{off}")
def dma(vbase, srd, soff, i):
    return Ins("buffer_load_dwordx4", [v(vbase + i), s(srd, 4), s(soff)], f"offen offset:{1024*i} lds")
def set_m0(slot): return Ins("s_add_u32", ["m0", s(S_WB), str(slot*TILE)])

def prologue(P):
    guard(P, 256, NAME)
    load_ptrs(P, [(4, "wq"), (6, "k"), (40, "vv"), (42, "ws")])
    for d, src, size in ((S_WQ, 4, 640*12288), (S_K, 6, 25165824), (S_V, 40, 25165824)):
        P.I("s_sub_u32", s(d), s(src), str(BIAS)); P.I("s_subb_u32", s(d+1), s(src+1), "0")
        P.I("s_mov_b32", s(d+2), hex(size + BIAS)); P.I("s_mov_b32", s(d+3), "0x20000")
    srd_from_arg(P, S_H1, 42, SZ_H1, WS_H1); srd_from_arg(P, S_O, 42, SZ_O, WS_O)
    P.I("v_lshrrev_b32", "v1", "6", "v0"); P.I("v_and_b32", "v2", "63", "v0"); P.I("v_readfirstlane_b32", s(S_W), "v1")
    P.I("s_and_b32", "s44", "s2", "7"); P.I("s_lshr_b32", "s45", "s2", "3")
    P.I("s_and_b32", "s46", "s44", "3"); P.I("s_lshl_b32", "s46", "s46", "3"); P.I("s_and_b32", "s47", "s45", "7"); P.I("s_add_u32", s(S_HEAD), "s46", "s47")
    P.I("s_lshr_b32", "s46", "s44", "2"); P.I("s_lshl_b32", "s46", "s46", "2"); P.I("s_lshr_b32", "s47", "s45", "3"); P.I("s_add_u32", s(S_QT), "s46", "s47")
    P.I("s_mul_i32", s(S_WB), s(S_W), "3072")
    L = "v2"
    t = lambda i: v(V_T2 + i)
    P.I("v_lshlrev_b32", v(V_L16), "4", L)
    P.I("s_mov_b32", "s48", str(0xAAAB))
    for i in range(3):
        P.I("v_add_u32", t(0), str(64*i), L)
        P.I("v_mul_u32_u24", t(1), "s48", t(0)) if False else P.I("v_mul_lo_u32", t(1), "s48", t(0))
        P.I("v_lshrrev_b32", t(1), "20", t(1))
        P.I("v_mul_u32_u24", t(2), "24", t(1)); P.I("v_sub_u32", t(2), t(0), t(2))
        P.I("v_and_b32", t(3), "6", t(1)); P.I("v_xor_b32", t(3), t(2), t(3))
        P.I("v_lshlrev_b32", t(3), "4", t(3))
        P.I("s_lshl_b32", "s49", s(S_W), "3"); P.I("v_add_u32", t(1), "s49", t(1))
        P.I("s_mov_b32", "s50", "12288"); P.I("v_mul_lo_u32", t(4), "s50", t(1)); P.I("v_add_u32", t(4), t(4), t(3))
        P.I("v_add_u32", v(V_DW + i), str(BIAS - 1024*i), t(4))
        P.I("v_mul_u32_u24", t(4), "384", t(1)) if False else (P.I("s_mov_b32", "s50", "384"), P.I("v_mul_lo_u32", t(4), "s50", t(1)))
        P.I("v_add_u32", t(4), t(4), t(3)); P.I("v_add_u32", v(V_DK + i), str(BIAS - 1024*i), t(4))
    P.I("v_lshrrev_b32", t(0), "4", L); P.I("v_bfe_u32", t(1), L, "2", "2"); P.I("v_and_b32", t(2), "3", L)
    P.I("v_lshlrev_b32", t(3), "2", t(0)); P.I("v_add_u32", t(3), t(3), t(1))
    P.I("s_mov_b32", "s50", "384"); P.I("v_mul_lo_u32", t(4), "s50", t(3))
    P.I("v_and_b32", t(5), "6", t(3))
    P.I("v_lshrrev_b32", t(6), "1", t(2)); P.I("v_lshlrev_b32", t(6), "4", t(6)); P.I("v_add_u32", t(4), t(4), t(6))
    P.I("v_and_b32", t(6), "1", t(2)); P.I("v_lshlrev_b32", t(6), "3", t(6)); P.I("v_add_u32", t(4), t(4), t(6))
    for t4 in range(4):
        P.I("v_xor_b32", t(6), str(2*t4), t(5)); P.I("v_lshlrev_b32", t(6), "4", t(6))
        P.I("v_add_u32", v(V_TRA + t4), t(4), t(6)); P.I("v_add_u32", v(V_TRB + t4), str(4*TILE), v(V_TRA + t4))
    P.I("v_and_b32", t(1), "15", L); P.I("v_mul_lo_u32", t(4), "s50", t(1)); P.I("v_and_b32", t(5), "6", t(1))
    for e in range(2):
        P.I("v_add_u32", t(6), str(4*e), t(0)); P.I("v_xor_b32", t(6), t(6), t(5)); P.I("v_lshlrev_b32", t(6), "4", t(6))
        P.I("v_add_u32", t(6), t(6), t(4)); P.I("v_add_u32", v(V_K + e), str(8*TILE), t(6))
    P.I("s_mul_i32", s(S_OWQ), s(S_HEAD), "384")
    P.I("s_mul_i32", s(S_OK), s(S_HEAD), "786432"); P.I("s_add_u32", s(S_OK), s(S_OK), str(1536*384)); P.I("s_mov_b32", s(S_OV), s(S_OK))
    P.I("s_lshl_b32", "s44", s(S_QT), "2"); P.I("s_add_u32", "s44", "s44", s(S_W)); P.I("s_mul_i32", s(S_OH), "s44", "81920")

def tile_dma(kind, idx):
    if kind == "wq": return [set_m0(idx % 8)] + [dma(V_DW, S_WQ, S_OWQ, i) for i in range(3)] + [Ins("s_add_u32", [s(S_OWQ), s(S_OWQ), str(32*12288)])]
    if kind == "k": return [set_m0(8 + idx % 4)] + [dma(V_DK, S_K, S_OK, i) for i in range(3)] + [Ins("s_add_u32", [s(S_OK), s(S_OK), str(TILE)])]
    if kind == "v": return [set_m0(4 + idx % 4)] + [dma(V_DK, S_V, S_OV, i) for i in range(3)] + [Ins("s_add_u32", [s(S_OV), s(S_OV), str(TILE)])]
def h1_loads(ks):
    return [Ins("buffer_load_dwordx4", [a(HBUF(ks, G), 4), v(V_L16), s(S_H1, 4), s(S_OH)], f"offen offset:{G*1024}") for G in range(4)] + \
           [Ins("s_add_u32", [s(S_OH), s(S_OH), "4096"])]

class Emit:
    def __init__(self): self.out = []
    def gap(self, mfma, scalar, vector):
        if mfma is not None: self.out.append(mfma)
        self.out += scalar + vector

def phase1(tiles):
    out = []
    hl = {}
    for i in range(LW):
        g = tile_dma("wq", i); tiles[("wq", i)] = g[1:4]; out += [g[0], Ins("s_nop", ["0"])] + g[1:]
        if i < DH:
            h = h1_loads(i); hl[i] = h[:4]; out += h
    g = tile_dma("k", 0); tiles[("k", 0)] = g[1:4]; out += [g[0], Ins("s_nop", ["0"])] + g[1:]
    NF = 240
    rd = {}
    def reads(F):
        ks, T = divmod(F, 12)
        r = [tr_read(F, T, u, ks % 8) for u in range(2)]; rd[F] = r; return r
    out.append(Wait(vm=tiles[("wq", 0)] + hl[0])); out.append(Ins("s_barrier"))
    for F in range(D): out += reads(F)
    zq = list(range(96, 192))
    extra = {13: [("k", 1), ("v", 0)], 14: [("k", 2), ("v", 1)], 15: [("k", 3), ("v", 2)]}
    for ks in range(20):
        sc = {g: [] for g in range(48)}; ve = {g: [] for g in range(48)}
        if ks > 0 or True:
            need = list(hl[ks])
            if ks + 1 < 20: need += tiles[("wq", ks+1)]
            st_wait = Wait(vm=need)
        pre = [st_wait, Ins("s_barrier")] if ks > 0 else [Wait(vm=(tiles[("wq", 1)]))  , Ins("s_barrier")]
        for p in range(12):
            F = ks*12 + p + D
            if F < NF: ve[4*p] += reads(F)
        for p in range(12):
            F = ks*12 + p
            w = Wait(lgkm=rd[F])
            if p == 0: pre.append(w)
            else: sc[4*p - 1].append(w)
        jobs = []
        if ks + LW < 20: jobs.append(("wq", ks + LW))
        hj = ks + DH if ks + DH < 20 else None
        gpos = 1
        def put_tile(kind, idx, gpos):
            g = tile_dma(kind, idx); tiles[(kind, idx)] = g[1:4]
            sc[gpos].append(g[0])
            ve[gpos+1].append(g[1]); ve[gpos+4].append(g[2]); ve[gpos+5].append(g[3]); sc[gpos+8].append(g[4])
        for kind, idx in jobs: put_tile(kind, idx, 1)
        if hj is not None:
            h = h1_loads(hj); hl[hj] = h[:4]
            for G in range(4): ve[13 + 4*G + (G % 2)*0].append(h[G]) if False else ve[[10, 13, 14, 17][G]].append(h[G])
            sc[18].append(h[4])
        for n_, (kind, idx) in enumerate(extra.get(ks, [])): put_tile(kind, idx, 21 + 12*n_)
        if ks >= 1 and (ks - 1) >= 14:
            zq += list(range(HBUF(ks-1, 0), HBUF(ks-1, 0) + 16))
        for g in range(48):
            while len(ve[g]) < 2 and zq and ks >= 2:
                ve[g].append(Ins("v_accvgpr_write_b32", [a(zq.pop(0)), "0"]))
        out += pre
        for g in range(48):
            T, G = divmod(g, 4)
            c = v(QACC(T, G), 4)
            m = Ins(MF, [c, a(FBUF(ks*12 + T), 4), a(HBUF(ks, G), 4), c if ks > 0 else "0"])
            out.append(m); out += sc[g] + ve[g]
    zq += list(range(HBUF(19, 0), HBUF(19, 0) + 16))
    return out, zq

def q_epilogue(zq):
    out = [Ins("s_nop", ["7"])]
    for s_ in range(6):
        for G in range(4):
            d = QF(s_, G); x = QACC(2*s_, G); y = QACC(2*s_+1, G)
            out += [Ins("v_cvt_pk_bf16_f32", [v(d), v(x), v(x+1)]), Ins("v_cvt_pk_bf16_f32", [v(d+1), v(x+2), v(x+3)]),
                    Ins("v_cvt_pk_bf16_f32", [v(d+2), v(y), v(y+1)]), Ins("v_cvt_pk_bf16_f32", [v(d+3), v(y+2), v(y+3)])]
    for z in zq: out.append(Ins("v_accvgpr_write_b32", [a(z), "0"]))
    for s_ in range(6):
        for G in range(4):
            d = QF(s_, G)
            out += [Ins("v_permlane32_swap_b32", [v(d), v(d+2)]), Ins("v_permlane32_swap_b32", [v(d+1), v(d+3)])]
        out.append(Ins("s_nop", ["0"]))
        for G in range(4):
            d = QF(s_, G)
            out += [Ins("v_permlane16_swap_b32", [v(d), v(d+2)]), Ins("v_permlane16_swap_b32", [v(d+1), v(d+3)])]
    out.append(Ins("s_nop", ["1"]))
    return out

def valu_template():
    free = {}
    for g in range(96):
        p, q = divmod(g, 4)
        F = (p + D) % 24
        used = 0
        if q == 0: used += 1 if F < 12 else 2
        free[g] = 2 - used
    for g in DMA_GAPS: free[g] -= 1
    roles = {g: [] for g in range(96)}
    pend = []
    done = {}
    for step in range(96):
        gg = 26 + step; g = gg % 96
        if step % 12 == 0 and step // 12 < 8:
            n = step // 12
            pend += [(n, "e", r) for r in range(4)] + [(n, "a", 0), (n, "a", 1), (n, "c", 0), (n, "a", 2), (n, "a", 3), (n, "c", 1)]
        f = free[g]
        def rdy(j):
            n, k, r = j
            if k == "e": return True
            deps = [(n, "e", r)] if k == "a" else [(n, "e", 2*r), (n, "e", 2*r+1)]
            return all(d in done and done[d] < gg for d in deps)
        while f > 0:
            c = [j for j in pend if rdy(j)]
            ex = [j for j in c if j[1] == "e"]; si = [j for j in c if j[1] != "e"]
            if f == 2 and ex: j = ex[0]; f -= 2
            elif si: j = si[0]; f -= 1
            else: break
            pend.remove(j); done[j] = gg; roles[g].append(j)
    assert not pend, pend
    for (n, k, r), gg in done.items():
        G = n % 4; lim = 96 + G - 1 if n < 4 else 96 + 24 + G - 1
        assert gg <= lim, (n, k, r, gg)
    return roles, done
DMA_K0, DMA_V0 = 5, 53
DMA_GAPS = [DMA_K0+1, DMA_K0+4, DMA_K0+5, DMA_V0+1, DMA_V0+4, DMA_V0+5]

def valu_ins(role, jS):
    n, k, r = role; kt, G = divmod(n, 4); sr = SREG(kt, G)
    if k == "e": return Ins("v_exp_f32", [v(sr + r), v(sr + r)])
    if k == "a": return Ins("v_add_f32", [v(LSUM(G)), v(LSUM(G)), v(sr + r)])
    return Ins("v_cvt_pk_bf16_f32", [v(PREG(jS % 2, G) + 2*kt + r), v(sr + 2*r), v(sr + 2*r + 1)])

def frag_reads(j, F):
    if F < 12:
        kt, s_ = divmod(F, 6); return [k_read(F, kt, s_, 8 + (j + 1) % 4)]
    T = F - 12; return [tr_read(F, T, u, 4 + j % 4) for u in range(2)]

def iteration(j, tiles, rd, roles):
    last = j == 15
    sc = {g: [] for g in range(96)}; ve = {g: [] for g in range(96)}
    need = list(tiles[("v", j)]) + (list(tiles[("k", j+2)]) if j + 2 <= 15 else [])
    sc[0].append(Wait(vm=need)); sc[1].append(Ins("s_barrier"))
    for p in range(24):
        F = p + D; jj = j
        if F >= 24: F -= 24; jj = j + 1
        if jj > 15: continue
        if F < 12 and jj + 1 > 15: continue
        r = frag_reads(jj, F); rd[(jj, F)] = r; ve[4*p] += r
    for F in range(24):
        jj, g = (j, 4*F - 1) if F > 0 else (j + 1, 95)
        if (jj, F) in rd and not (F < 12 and jj == 15):
            sc[g].append(Wait(lgkm=rd[(jj, F)]))
    for kind, idx, g0 in (("k", j + 4, DMA_K0), ("v", j + 3, DMA_V0)):
        if idx <= 15:
            g = tile_dma(kind, idx); tiles[(kind, idx)] = g[1:4]
            sc[g0].append(g[0]); ve[g0+1].append(g[1]); ve[g0+4].append(g[2]); ve[g0+5].append(g[3]); sc[g0+8 if (g0+8) % 4 != 3 else g0+9].append(g[4])
    for g in range(96):
        for role in roles[g]:
            n = role[0]
            jS = j + 1 if g >= 26 else j
            if jS > 15: continue
            ve[g].append(valu_ins(role, jS))
    out = []
    for g in range(96):
        if g < 48:
            if not last:
                kt, rem = divmod(g, 24); s_, G = divmod(rem, 4)
                c = v(SREG(kt, G), 4)
                out.append(Ins(MF, [c, a(FBUF(g // 4), 4), v(QF(s_, G), 4), c if s_ > 0 else v(NEGM(G), 4)]))
        else:
            T, G = divmod(g - 48, 4); c = a(OACC(T, G), 4)
            out.append(Ins(MF, [c, a(FBUF(g // 4), 4), v(PREG(j % 2, G), 4), c]))
        out += sc[g] + ve[g]
    return out

def pre_loop(tiles, rd, roles):
    out = []
    out.append(Wait(vm=tiles[("k", 0)] + tiles[("k", 1)])); out.append(Ins("s_barrier"))
    r0 = {}
    def rds(F):
        kt, s_ = divmod(F, 6); r0[F] = [k_read(F, kt, s_, 8)]; return r0[F]
    for F in range(D): out += rds(F)
    out.append(Wait(lgkm=r0[0]))
    for g in range(48):
        kt, rem = divmod(g, 24); s_, G = divmod(rem, 4); c = v(SREG(kt, G), 4); F = g // 4
        out.append(Ins(MF, [c, a(FBUF(F), 4), v(QF(s_, G), 4), c if s_ > 0 else "0"]))
        if g % 4 == 3 and F + 1 < 12: out.append(Wait(lgkm=r0[F+1]))
        if g % 4 == 0 and F + D < 12: out += rds(F + D)
    for F in range(D):
        r = frag_reads(0, F); rd[(0, F)] = r; out += r
    out.append(Ins("s_nop", ["3"]))
    t0, t1 = TMP, TMP + 1
    for G in range(4):
        A, B = SREG(0, G), SREG(1, G); m = v(TMP + 2 + G)
        out += [Ins("v_max3_f32", [m, v(A), v(A+1), v(A+2)]), Ins("v_max3_f32", [m, m, v(A+3), v(B)]),
                Ins("v_max3_f32", [m, m, v(B+1), v(B+2)]), Ins("v_max_f32", [m, m, v(B+3)])]
    for G in range(4):
        m = v(TMP + 2 + G)
        out += [Ins("v_mov_b32", [v(t0), m]), Ins("s_nop", ["1"]), Ins("v_permlane32_swap_b32", [m, v(t0)]), Ins("v_max_f32", [m, m, v(t0)]),
                Ins("v_mov_b32", [v(t0), m]), Ins("s_nop", ["1"]), Ins("v_permlane16_swap_b32", [m, v(t0)]), Ins("v_max_f32", [m, m, v(t0)])]
    for G in range(4):
        for r in range(4): out.append(Ins("v_sub_f32", [v(NEGM(G) + r), "0", v(TMP + 2 + G)]))
        out.append(Ins("v_mov_b32", [v(LSUM(G)), "0"]))
    for kt in range(2):
        for G in range(4):
            for r in range(4): out.append(Ins("v_add_f32", [v(SREG(kt, G) + r), v(SREG(kt, G) + r), v(NEGM(G))]))
    todo = [role for g in range(26, 96) for role in roles[g]]
    ex = [x for x in todo if x[1] == "e"]; rest = [x for x in todo if x[1] != "e"]
    for x in ex: out.append(valu_ins(x, 0))
    out.append(Ins("s_nop", ["0"]))
    for x in rest: out.append(valu_ins(x, 0))
    out.append(Wait(lgkm=rd[(0, 0)]))
    return out

def epilogue():
    out = [Ins("s_nop", ["7"])]
    t0 = TMP
    for G in range(4):
        l = v(LSUM(G))
        out += [Ins("v_mov_b32", [v(t0), l]), Ins("s_nop", ["1"]), Ins("v_permlane32_swap_b32", [l, v(t0)]), Ins("v_add_f32", [l, l, v(t0)]),
                Ins("v_mov_b32", [v(t0), l]), Ins("s_nop", ["1"]), Ins("v_permlane16_swap_b32", [l, v(t0)]), Ins("v_add_f32", [l, l, v(t0)])]
    for G in range(4): out.append(Ins("v_rcp_f32", [v(LSUM(G)), v(LSUM(G))]))
    out += [Ins("s_lshl_b32", ["s44", s(S_QT), "3"]), Ins("s_lshl_b32", ["s45", s(S_W), "1"]), Ins("s_add_u32", ["s44", "s44", "s45"]),
            Ins("s_mul_i32", ["s44", "s44", "393216"]), Ins("s_mul_i32", ["s45", s(S_HEAD), "12288"]), Ins("s_add_u32", ["s44", "s44", "s45"]),
            Ins("s_add_u32", ["s45", "s44", "393216"])]
    buf = 0
    for s_ in range(6):
        for G in range(4):
            b = 96 + 12*(buf % 4); buf += 1
            for r in range(4):
                out.append(Ins("v_accvgpr_read_b32", [v(b + r), a(OACC(2*s_, G) + r)]))
                out.append(Ins("v_accvgpr_read_b32", [v(b + 4 + r), a(OACC(2*s_+1, G) + r)]))
            for r in range(8): out.append(Ins("v_mul_f32", [v(b + r), v(b + r), v(LSUM(G))]))
            for h in range(4): out.append(Ins("v_cvt_pk_bf16_f32", [v(b + 8 + h), v(b + 2*h), v(b + 2*h + 1)]))
            so = "s44" if G < 2 else "s45"
            off = (G & 1)*1024 + (s_ % 2)*2048
            out.append(Ins("buffer_store_dwordx4", [v(b + 8, 4), v(V_L16), s(S_O, 4), so], f"offen offset:{off}"))
        if s_ % 2 == 1 and s_ < 5:
            out += [Ins("s_add_u32", ["s44", "s44", "4096"]), Ins("s_add_u32", ["s45", "s45", "4096"])]
    return out

def gen_k2(loop=True, prof=False):
    pf = Prof(prof)
    assert all((p*43691) >> 20 == p // 24 for p in range(192))
    P = Prog(); kernel_header(P, NAME); prologue(P)
    tiles, rd = {}, {}
    roles, done = valu_template()
    p1, zq = phase1(tiles)
    p1 = pf.stamp() + p1 + pf.stamp()
    qe = q_epilogue(zq)
    pl = pre_loop(tiles, rd, roles) + pf.stamp()
    its = [iteration(j, tiles, rd, roles) for j in range(16)]
    ep = pf.stamp() + epilogue() + pf.stamp() + pf.store(42, 2, 210)
    lin = P.ins + p1 + qe + pl + sum(its, []) + ep
    resolve_waits(lin)
    if loop:
        def norm(x): return re.sub(r"(vmcnt|lgkmcnt)\(\d+\)", r"\1(#)", str(x))
        A = sum(its[0:4], []); B = sum(its[4:8], []); C = sum(its[8:12], [])
        assert [norm(x) for x in A] == [norm(x) for x in B] == [norm(x) for x in C], "loop bodies differ"
        for x, y, z in zip(A, B, C):
            if x.kind == "wait":
                t = []
                for cn in ("vmcnt", "lgkmcnt"):
                    ms = [re.search(cn + r"\((\d+)\)", str(w)) for w in (x, y, z)]
                    if ms[0]: t.append(f"{cn}({min(int(m.group(1)) for m in ms)})")
                x.text = y.text = z.text = "s_waitcnt " + " ".join(t)
        P.add(p1 + qe + pl)
        P.I("s_mov_b32", s(S_CNT), "3")
        P.raw(".p2align 6"); P.label("L_k2_loop")
        P.add(A)
        P.I("s_sub_u32", s(S_CNT), s(S_CNT), "1"); P.I("s_cmp_lg_u32", s(S_CNT), "0"); P.I("s_cbranch_scc1", "L_k2_loop")
        P.add(sum(its[12:], []) + ep)
    else:
        P.add(p1 + qe + pl + sum(its, []) + ep)
    finish(P, NAME)
    return P, dict(vgpr=256, agpr=256, lds=12*TILE, grid=256, block=256, linear=lin)
```

```python
from common import *
NAME = "k3_kernel"
MF = "v_mfma_f32_16x16x32_bf16"
STG = 20480
NS = 6
D = 7
NB = 12
NBR = 12
DB = 10
LS = 5
BIAS = 4096
def ACC(T, G): return (T*2+G)*4
def FBUF(F): return 80 + (F % NB)*4
def BBUF(kk, G): return 128 + (kk % NBR)*8 + G*4
V_TE, V_TO, V_TE2, V_TO2, V_D, V_L16 = 10, 11, 12, 13, 14, 19
S_WO, S_OB, S_PT = 8, 12, 16
S_W, S_WB, S_OWO, S_OO, S_CNT, S_PO = 28, 31, 32, 33, 36, 34

def tr_read(F, kk, T, u):
    st = (kk // 2) % NS; h = kk % 2
    hi = st >= 3
    base = (V_TE2 if hi else V_TE) if T % 2 == 0 else (V_TO2 if hi else V_TO)
    off = (st % 3)*STG + h*10240 + u*5120 + (T - T % 2)*32
    return Ins("ds_read_b64_tr_b16", [a(FBUF(F) + 2*u, 2), v(base)], f"offset:{off}")
def stage_dma(m):
    st = m % NS
    o = [Ins("s_add_u32", ["m0", s(S_WB), str(st*STG)])]
    o += [Ins("buffer_load_dwordx4", [v(V_D + i), s(S_WO, 4), s(S_OWO)], f"offen offset:{1024*i} lds") for i in range(4)]
    o += [Ins("s_add_u32", ["m0", s(S_WB), str(st*STG + 4096)])]
    o += [Ins("buffer_load_dwordx4", [v(V_D + 4), s(S_WO, 4), s(S_OWO)], "offen lds")]
    o += [Ins("s_add_u32", [s(S_OWO), s(S_OWO), str(64*1280)])]
    return o
def b_loads(kk):
    return [Ins("buffer_load_dwordx4", [a(BBUF(kk, G), 4), v(V_L16), s(S_OB, 4), s(S_OO)], f"offen offset:{G*1024}") for G in range(2)] + \
           [Ins("s_add_u32", [s(S_OO), s(S_OO), "2048"])]

def prologue(P, fp32):
    guard(P, 256, NAME)
    load_ptrs(P, [(4, "wo"), (42, "ws")])
    P.I("s_sub_u32", s(S_WO), "s4", str(BIAS)); P.I("s_subb_u32", s(S_WO+1), "s5", "0"); P.I("s_mov_b32", s(S_WO+2), hex(6144*1280 + BIAS)); P.I("s_mov_b32", s(S_WO+3), "0x20000")
    srd_from_arg(P, S_OB, 42, SZ_O, WS_O); srd_from_arg(P, S_PT, 42, SZ_PART, WS_PART)
    P.I("v_lshrrev_b32", "v1", "6", "v0"); P.I("v_and_b32", "v2", "63", "v0"); P.I("v_readfirstlane_b32", s(S_W), "v1")
    P.I("s_and_b32", "s44", "s2", "7"); P.I("s_lshr_b32", "s45", "s2", "3")
    P.I("s_and_b32", "s46", "s44", "3")
    P.I("s_lshr_b32", "s47", "s44", "2"); P.I("s_lshl_b32", "s47", "s47", "3"); P.I("s_lshr_b32", "s48", "s45", "2"); P.I("s_add_u32", "s47", "s47", "s48")
    P.I("s_and_b32", "s48", "s45", "3")
    P.I("s_mul_i32", s(S_WB), s(S_W), "5120")
    L = "v2"; t = lambda i: v(20 + i)
    P.I("v_lshlrev_b32", v(V_L16), "4", L)
    assert all((p*52429) >> 20 == p // 20 for p in range(320))
    P.I("s_mov_b32", "s49", "52429"); P.I("s_mov_b32", "s50", "1280")
    for i in range(5):
        P.I("v_add_u32", t(0), str(64*i), L); P.I("v_mul_lo_u32", t(1), "s49", t(0)); P.I("v_lshrrev_b32", t(1), "20", t(1))
        P.I("v_mul_u32_u24", t(2), "20", t(1)); P.I("v_sub_u32", t(2), t(0), t(2))
        P.I("v_bfe_u32", t(3), t(1), "2", "1"); P.I("v_lshlrev_b32", t(3), "1", t(3)); P.I("v_xor_b32", t(3), t(2), t(3)); P.I("v_lshlrev_b32", t(3), "4", t(3))
        P.I("s_lshl_b32", "s51", s(S_W), "4"); P.I("v_add_u32", t(1), "s51", t(1))
        P.I("v_mul_lo_u32", t(4), "s50", t(1)); P.I("v_add_u32", t(4), t(4), t(3))
        P.I("v_add_u32", v(V_D + i), str(BIAS - (1024*i if i < 4 else 0)), t(4))
    P.I("v_lshrrev_b32", t(0), "4", L); P.I("v_bfe_u32", t(1), L, "2", "2"); P.I("v_and_b32", t(2), "3", L)
    P.I("v_lshlrev_b32", t(3), "2", t(0)); P.I("v_add_u32", t(3), t(3), t(1)); P.I("v_mul_u32_u24", t(4), "320", t(3)) if False else (P.I("s_mov_b32", "s51", "320"), P.I("v_mul_lo_u32", t(4), "s51", t(3)))
    P.I("v_lshlrev_b32", t(5), "3", t(2)); P.I("v_add_u32", t(4), t(4), t(5))
    P.I("v_and_b32", t(5), "1", t(0)); P.I("v_lshlrev_b32", t(5), "5", t(5))
    P.I("v_add_u32", v(V_TE), t(4), t(5)); P.I("v_xor_b32", t(5), "32", t(5)); P.I("v_add_u32", v(V_TO), t(4), t(5))
    P.I("v_add_u32", v(V_TE2), str(3*STG), v(V_TE)); P.I("v_add_u32", v(V_TO2), str(3*STG), v(V_TO))
    P.I("s_mul_i32", s(S_OWO), "s46", str(1536*1280)); P.I("s_mul_i32", "s51", "s48", "320"); P.I("s_add_u32", s(S_OWO), s(S_OWO), "s51")
    P.I("s_lshl_b32", "s51", "s47", "2"); P.I("s_add_u32", "s51", "s51", s(S_W))
    P.I("s_mul_i32", s(S_OO), "s51", "393216"); P.I("s_mul_i32", "s52", "s46", str(48*2048)); P.I("s_add_u32", s(S_OO), s(S_OO), "s52")
    per = 10240 if fp32 else 5120
    P.I("s_mul_i32", s(S_PO), "s46", str(128*4*per)); P.I("s_lshl_b32", "s52", "s51", "1"); P.I("s_mul_i32", "s52", "s52", str(4*per)); P.I("s_add_u32", s(S_PO), s(S_PO), "s52")
    P.I("s_mul_i32", "s52", "s48", str(per)); P.I("s_add_u32", s(S_PO), s(S_PO), "s52")

def gen_k3(loop=True, prof=False, fp32=True):
    pf = Prof(prof)
    P = Prog(); kernel_header(P, NAME); prologue(P, fp32)
    st, bl, rd = {}, {}, {}
    pre = pf.stamp()
    def nopm0(g):
        o = []
        for i, x in enumerate(g):
            o.append(x)
            if x.defs[:1] == ["m0"]: o.append(Ins("s_nop", ["0"]))
        return o
    for m in range(LS):
        g = stage_dma(m); st[m] = [x for x in g if x.kind == "vmem"]; pre += nopm0(g)
        for kk in (2*m, 2*m+1):
            if kk < DB:
                b = b_loads(kk); bl[kk] = b[:2]; pre += b
    def reads(F):
        kk, T = divmod(F, 10); r = [tr_read(F, kk, T, u) for u in range(2)]; rd[F] = r; return r
    pre += [Wait(vm=st[0] + bl[0]), Ins("s_barrier")]
    for F in range(D): pre += reads(F)
    NF = 480
    stages = []
    for m in range(24):
        n = 40
        sc = {g: [] for g in range(n)}; ve = {g: [] for g in range(n)}
        need = list(bl[2*m]) + (list(st[m+1]) if m + 1 < 24 else [])
        head = [Wait(vm=need), Ins("s_barrier")]
        for p in range(20):
            F = m*20 + p + D
            if F < NF:
                r = reads(F); ve[2*p].append(r[0]); ve[2*p+1].append(r[1])
        for p in range(20):
            F = m*20 + p; w = Wait(lgkm=rd[F])
            if p == 0: head.append(w)
            else: sc[2*p - 1].append(w)
        sc[18].append(Wait(vm=bl[2*m+1]))
        if m + LS < 24:
            g = stage_dma(m + LS); st[m + LS] = [x for x in g if x.kind == "vmem"]
            sc[0].append(g[0]); ve[2].append(g[1]); ve[5].append(g[2]); ve[8].append(g[3]); ve[11].append(g[4])
            sc[12].append(g[5]); ve[14].append(g[6]); sc[16].append(g[7])
        for h in range(2):
            kk = 2*m + h + DB
            if kk < 48:
                b = b_loads(kk); bl[kk] = b[:2]
                g0 = 21 + 8*h
                ve[g0].append(b[0]); ve[g0+3].append(b[1]); sc[g0+5].append(b[2])
        o = list(head)
        for g in range(n):
            h, rem = divmod(g, 20); T, G = divmod(rem, 2); kk = 2*m + h; c = a(ACC(T, G), 4)
            o.append(Ins(MF, [c, a(FBUF(kk*10 + T), 4), a(BBUF(kk, G), 4), c if kk > 0 else "0"]))
            o += sc[g] + ve[g]
        stages.append(o)
    ep = pf.stamp() + [Ins("s_nop", ["7"])]
    if fp32:
        for G in range(2):
            for T in range(10):
                so = s(S_PO)
                off = (T % 4)*1024
                if T % 4 == 0 and (T > 0 or G > 0):
                    ep.append(Ins("s_add_u32", [s(S_PO), s(S_PO), str(4096 if T > 0 else (4*10240 - 8192))]))
                ep.append(Ins("buffer_store_dwordx4", [a(ACC(T, G), 4), v(V_L16), s(S_PT, 4), so], f"offen offset:{off}"))
    else:
        for G in range(2):
            for Tp in range(5):
                b = 24 + 12*((G*5+Tp) % 4)
                for r in range(4):
                    ep.append(Ins("v_accvgpr_read_b32", [v(b + r), a(ACC(2*Tp, G) + r)])); ep.append(Ins("v_accvgpr_read_b32", [v(b + 4 + r), a(ACC(2*Tp+1, G) + r)]))
                for h in range(4): ep.append(Ins("v_cvt_pk_bf16_f32", [v(b + 8 + h), v(b + 2*h), v(b + 2*h + 1)]))
                if Tp == 4: ep.append(Ins("s_add_u32", [s(S_PO), s(S_PO), "4096"]))
                ep.append(Ins("buffer_store_dwordx4", [v(b + 8, 4), v(V_L16), s(S_PT, 4), s(S_PO)], f"offen offset:{(Tp % 4)*1024}"))
            if G == 0: ep.append(Ins("s_add_u32", [s(S_PO), s(S_PO), str(4*5120 - 4096)]))
    ep += pf.stamp() + pf.store(42, 3, 24)
    lin = P.ins + pre + sum(stages, []) + ep
    resolve_waits(lin)
    if loop:
        def norm(x): return re.sub(r"(vmcnt|lgkmcnt)\(\d+\)", r"\1(#)", str(x))
        A = sum(stages[6:12], []); B = sum(stages[12:18], [])
        assert [norm(x) for x in A] == [norm(x) for x in B]
        for x, y in zip(A, B):
            if x.kind == "wait":
                t = []
                for cn in ("vmcnt", "lgkmcnt"):
                    ms = [re.search(cn + r"\((\d+)\)", str(w)) for w in (x, y)]
                    if ms[0]: t.append(f"{cn}({min(int(m.group(1)) for m in ms)})")
                x.text = y.text = "s_waitcnt " + " ".join(t)
        P.add(pre + sum(stages[:6], []))
        P.I("s_mov_b32", s(S_CNT), "2"); P.raw(".p2align 6"); P.label("L_k3_loop"); P.add(A)
        P.I("s_sub_u32", s(S_CNT), s(S_CNT), "1"); P.I("s_cmp_lg_u32", s(S_CNT), "0"); P.I("s_cbranch_scc1", "L_k3_loop")
        P.add(sum(stages[18:], []) + ep)
    else:
        P.add(pre + sum(stages, []) + ep)
    finish(P, NAME)
    return P, dict(vgpr=128, agpr=224, lds=NS*STG, grid=256, block=256, linear=lin)
```

```python
from common import *
NAME = "k5_kernel"
MF = "v_mfma_f32_16x16x32_bf16"
D = 5; NB = 8; NBR = 6; DB = 5
BIAS = 2048
MATB = 61440
def ACC(T, G): return (T*4+G)*4
def FBUF(F): return 96 + (F % NB)*4
def BBUF(ks, G): return 128 + (ks % NBR)*16 + G*4
V_TG, V_TU, V_D, V_L16 = 10, 11, 12, 15
S_WG, S_WU, S_HB, S_HO = 8, 12, 16, 20
S_W, S_M0, S_OW, S_OH, S_PO = 28, 31, 32, 33, 34
S_SEL = 52

def tr_read(F, ks, T, u):
    base = V_TG if T < 3 else V_TU
    return Ins("ds_read_b64_tr_b16", [a(FBUF(F) + 2*u, 2), v(base)], f"offset:{ks*3072 + u*1536 + (T % 3)*32}")
def w_dma(m):
    return [Ins("s_add_u32", ["m0", s(S_M0), str(m*6144)])] + \
           [Ins("buffer_load_dwordx4", [v(V_D + i), s(S_SEL, 4), s(S_OW)], f"offen offset:{1024*i} lds") for i in range(3)] + \
           [Ins("s_add_u32", [s(S_OW), s(S_OW), str(64*3072)])]
def b_loads(ks):
    return [Ins("buffer_load_dwordx4", [a(BBUF(ks, G), 4), v(V_L16), s(S_HB, 4), s(S_OH)], f"offen offset:{G*1024}") for G in range(4)] + \
           [Ins("s_add_u32", [s(S_OH), s(S_OH), "4096"])]

def prologue(P):
    guard(P, 256, NAME)
    load_ptrs(P, [(4, "wg"), (6, "wu"), (42, "ws")])
    P.I("v_lshrrev_b32", "v1", "6", "v0"); P.I("v_and_b32", "v2", "63", "v0"); P.I("v_readfirstlane_b32", s(S_W), "v1")
    srd_from_arg(P, S_HB, 42, SZ_H2, WS_H2); srd_from_arg(P, S_HO, 42, SZ_HH, WS_HH)
    P.I("s_and_b32", "s56", s(S_W), "1"); P.I("s_cmp_eq_u32", "s56", "0")
    P.I("s_cselect_b32", "s44", "s4", "s6"); P.I("s_cselect_b32", "s45", "s5", "s7")
    P.I("s_sub_u32", s(S_SEL), "s44", str(BIAS)); P.I("s_subb_u32", s(S_SEL+1), "s45", "0"); P.I("s_mov_b32", s(S_SEL+2), hex(640*3072 + BIAS)); P.I("s_mov_b32", s(S_SEL+3), "0x20000")
    P.I("s_and_b32", "s44", "s2", "7"); P.I("s_lshr_b32", "s45", "s2", "3")
    P.I("s_lshr_b32", "s46", "s44", "2"); P.I("s_lshl_b32", "s46", "s46", "2"); P.I("s_lshr_b32", "s47", "s45", "3"); P.I("s_add_u32", "s46", "s46", "s47")
    P.I("s_and_b32", "s47", "s44", "3"); P.I("s_lshl_b32", "s47", "s47", "3"); P.I("s_and_b32", "s48", "s45", "7"); P.I("s_add_u32", "s47", "s47", "s48")
    P.I("s_mul_i32", s(S_M0), "s56", str(MATB)); P.I("s_lshr_b32", "s57", s(S_W), "1"); P.I("s_mul_i32", "s58", "s57", "3072"); P.I("s_add_u32", s(S_M0), s(S_M0), "s58")
    L = "v2"; t = lambda i: v(20 + i)
    P.I("v_lshlrev_b32", v(V_L16), "4", L)
    assert all((p*43691) >> 18 == p // 6 for p in range(192))
    P.I("s_mov_b32", "s49", "43691"); P.I("s_mov_b32", "s50", "3072")
    for i in range(3):
        P.I("v_add_u32", t(0), str(64*i), L); P.I("v_mul_lo_u32", t(1), "s49", t(0)); P.I("v_lshrrev_b32", t(1), "18", t(1))
        P.I("v_mul_u32_u24", t(2), "6", t(1)); P.I("v_sub_u32", t(2), t(0), t(2)); P.I("v_lshlrev_b32", t(2), "4", t(2))
        P.I("v_mul_lo_u32", t(4), "s50", t(1)); P.I("v_add_u32", t(4), t(4), t(2)); P.I("v_add_u32", v(V_D + i), str(BIAS - 1024*i), t(4))
    P.I("v_lshrrev_b32", t(0), "4", L); P.I("v_bfe_u32", t(1), L, "2", "2"); P.I("v_and_b32", t(2), "3", L)
    P.I("v_lshlrev_b32", t(3), "2", t(0)); P.I("v_add_u32", t(3), t(3), t(1)); P.I("v_mul_u32_u24", t(4), "96", t(3)) if False else (P.I("s_mov_b32", "s51", "96"), P.I("v_mul_lo_u32", t(4), "s51", t(3)))
    P.I("v_lshlrev_b32", t(5), "3", t(2)); P.I("v_add_u32", v(V_TG), t(4), t(5)); P.I("v_add_u32", v(V_TU), str(MATB), v(V_TG))
    P.I("s_mul_i32", s(S_OW), "s57", str(32*3072)); P.I("s_mul_i32", "s51", "s47", "96"); P.I("s_add_u32", s(S_OW), s(S_OW), "s51")
    P.I("s_lshl_b32", "s51", "s46", "2"); P.I("s_add_u32", "s51", "s51", s(S_W))
    P.I("s_mul_i32", s(S_OH), "s51", "81920")
    P.I("s_mul_i32", s(S_PO), "s51", str(48*4096)); P.I("s_mov_b32", "s59", "s47")

def gen_k5(prof=False):
    pf = Prof(prof)
    P = Prog(); kernel_header(P, NAME); prologue(P)
    wd, bl, rd = {}, {}, {}
    pre = pf.stamp()
    def put(g):
        o = []
        for x in g:
            o.append(x)
            if x.defs[:1] == ["m0"]: o.append(Ins("s_nop", ["0"]))
        return o
    for m in range(4):
        g = w_dma(m); wd[m] = g[1:4]; pre += put(g)
        for ks in ([0, 1] if m == 0 else [m + 1]):
            if ks < DB: b = b_loads(ks); bl[ks] = b[:4]; pre += b
    def reads(F):
        ks, T = divmod(F, 6); r = [tr_read(F, ks, T, u) for u in range(2)]; rd[F] = r; return r
    pre += [Wait(vm=wd[0] + bl[0]), Ins("s_barrier")]
    for F in range(D): pre += reads(F)
    body = []
    for ks in range(20):
        n = 24
        sc = {g: [] for g in range(n)}; ve = {g: [] for g in range(n)}
        head = []
        need = list(bl[ks])
        bar = False
        if ks + 1 < 20 and (ks + 1) % 2 == 0: need += wd[(ks+1)//2]; bar = True
        head.append(Wait(vm=need))
        if bar: head.append(Ins("s_barrier"))
        for p in range(6):
            F = ks*6 + p + D
            if F < 120: r = reads(F); ve[4*p] += r
        for p in range(6):
            F = ks*6 + p; w = Wait(lgkm=rd[F])
            if p == 0: head.append(w)
            else: sc[4*p - 1].append(w)
        if ks % 2 == 0 and ks//2 + 4 < 10:
            g = w_dma(ks//2 + 4); wd[ks//2 + 4] = g[1:4]
            sc[1].append(g[0]); ve[2].append(g[1]); ve[3].append(g[2]); ve[5].append(g[3]); sc[6].append(g[4])
        if ks + DB < 20:
            b = b_loads(ks + DB); bl[ks + DB] = b[:4]
            for G, gp in enumerate((9, 11, 14, 17)): ve[gp].append(b[G])
            sc[18].append(b[4])
        body += head
        for g in range(n):
            T, G = divmod(g, 4); c = a(ACC(T, G), 4)
            body.append(Ins(MF, [c, a(FBUF(ks*6 + T), 4), a(BBUF(ks, G), 4), c if ks > 0 else "0"]))
            body += sc[g] + ve[g]
    ep = pf.stamp() + [Ins("s_nop", ["7"])]
    for G in range(4):
        for T in range(3):
            b = 100
            for r in range(4):
                ep.append(Ins("v_accvgpr_read_b32", [v(b + r), a(ACC(T, G) + r)])); ep.append(Ins("v_accvgpr_read_b32", [v(b + 4 + r), a(ACC(T+3, G) + r)]))
            for r in range(4): ep.append(Ins("v_max_f32", [v(b + r), "0", v(b + r)]))
            for r in range(4): ep.append(Ins("v_mul_f32", [v(b + r), v(b + r), v(b + 4 + r)]))
            d = 32 + G*8 + T*2
            ep.append(Ins("v_cvt_pk_bf16_f32", [v(d), v(b), v(b+1)])); ep.append(Ins("v_cvt_pk_bf16_f32", [v(d+1), v(b+2), v(b+3)]))
    ep += [Ins("s_mul_i32", ["s44", "s59", "3"]), Ins("s_lshr_b32", ["s45", "s44", "1"]), Ins("s_lshl_b32", ["s45", "s45", "12"]), Ins("s_add_u32", [s(S_PO), s(S_PO), "s45"]),
           Ins("s_add_u32", ["s46", s(S_PO), "4096"]), Ins("s_and_b32", ["s47", "s59", "1"]), Ins("s_cmp_eq_u32", ["s47", "1"]), Ins("s_cbranch_scc1", ["L_k5_odd"])]
    ev = []
    for G in range(4):
        d = 32 + G*8
        ev.append(Ins("buffer_store_dwordx4", [v(d, 4), v(V_L16), s(S_HO, 4), s(S_PO)], f"offen offset:{G*1024}"))
        ev.append(Ins("buffer_store_dwordx2", [v(d+4, 2), v(V_L16), s(S_HO, 4), "s46"], f"offen offset:{G*1024}"))
    ev.append(Ins("s_branch", ["L_k5_done"]))
    od = [Label("L_k5_odd")]
    for G in range(4):
        d = 32 + G*8
        od.append(Ins("buffer_store_dwordx2", [v(d, 2), v(V_L16), s(S_HO, 4), s(S_PO)], f"offen offset:{G*1024 + 8}"))
        od.append(Ins("buffer_store_dwordx4", [v(d+2, 4), v(V_L16), s(S_HO, 4), "s46"], f"offen offset:{G*1024}"))
    od.append(Label("L_k5_done"))
    tail = pf.stamp() + pf.store(42, 5, 24)
    lin = P.ins + pre + body + ep + ev + od + tail
    resolve_waits(lin)
    P.add(pre + body + ep + ev + od + tail)
    finish(P, NAME)
    return P, dict(vgpr=128, agpr=224, lds=2*MATB, grid=256, block=256, linear=lin)
```

```python
from common import *
NAME = "k6_kernel"
MF = "v_mfma_f32_16x16x32_bf16"
D = 5; NB = 8; NBR = 6; DB = 5
NS = 7; LS = 6
STG = 5120; WREG = NS*STG
BIAS = 4096
def ACC(T, G): return (T*4+G)*4
def FBUF(F): return 80 + (F % NB)*4
def BBUF(ks, G): return 112 + (ks % NBR)*16 + G*4
V_T, V_D, V_L16 = 10, 12, 17
S_WD, S_HB, S_X1, S_OUT, S_MOD = 8, 12, 16, 20, 24
S_W, S_WB, S_OW, S_OH = 28, 31, 32, 33

def tr_read(F, ks, T, u):
    return Ins("ds_read_b64_tr_b16", [a(FBUF(F) + 2*u, 2), v(V_T)], f"offset:{(ks % NS)*STG + u*2560 + T*32}")
def w_dma(ks):
    st = ks % NS
    o = [Ins("s_add_u32", ["m0", s(S_WB), str(st*STG)])]
    o += [Ins("buffer_load_dwordx4", [v(V_D + i), s(S_WD, 4), s(S_OW)], f"offen offset:{1024*i} lds") for i in range(4)]
    o += [Ins("s_add_u32", ["m0", s(S_WB), str(st*STG + 4096)])]
    o += [Ins("buffer_load_dwordx4", [v(V_D + 4), s(S_WD, 4), s(S_OW)], "offen lds")]
    o += [Ins("s_add_u32", [s(S_OW), s(S_OW), str(32*1280)])]
    return o
def b_loads(ks):
    return [Ins("buffer_load_dwordx4", [a(BBUF(ks, G), 4), v(V_L16), s(S_HB, 4), s(S_OH)], f"offen offset:{G*1024}") for G in range(4)] + \
           [Ins("s_add_u32", [s(S_OH), s(S_OH), "4096"])]

def prologue(P):
    guard(P, 256, NAME)
    load_ptrs(P, [(4, "wd"), (6, "out"), (42, "ws")])
    P.I("v_lshrrev_b32", "v1", "6", "v0"); P.I("v_and_b32", "v2", "63", "v0"); P.I("v_readfirstlane_b32", s(S_W), "v1")
    P.I("s_sub_u32", s(S_WD), "s4", str(BIAS)); P.I("s_subb_u32", s(S_WD+1), "s5", "0"); P.I("s_mov_b32", s(S_WD+2), hex(1536*1280 + BIAS)); P.I("s_mov_b32", s(S_WD+3), "0x20000")
    srd_from_arg(P, S_HB, 42, SZ_HH, WS_HH); srd_from_arg(P, S_X1, 42, SZ_X1, WS_X1); srd_from_arg(P, S_OUT, 6, 2048*1280); srd_from_arg(P, S_MOD, 42, SZ_MOD, WS_MOD)
    P.I("s_and_b32", "s44", "s2", "7"); P.I("s_lshr_b32", "s45", "s2", "3")
    P.I("s_lshr_b32", "s46", "s44", "1"); P.I("s_lshl_b32", "s46", "s46", "3"); P.I("s_lshr_b32", "s47", "s45", "2"); P.I("s_add_u32", "s46", "s46", "s47")
    P.I("s_and_b32", "s47", "s44", "1"); P.I("s_lshl_b32", "s47", "s47", "2"); P.I("s_and_b32", "s48", "s45", "3"); P.I("s_add_u32", "s47", "s47", "s48")
    P.I("s_mul_i32", s(S_WB), s(S_W), str(WREG))
    L = "v2"; t = lambda i: v(20 + i)
    P.I("v_lshlrev_b32", v(V_L16), "4", L)
    assert all((p*52429) >> 19 == p // 10 for p in range(320))
    P.I("s_mov_b32", "s49", "52429"); P.I("s_mov_b32", "s50", "1280")
    for i in range(5):
        P.I("v_add_u32", t(0), str(64*i), L); P.I("v_mul_lo_u32", t(1), "s49", t(0)); P.I("v_lshrrev_b32", t(1), "19", t(1))
        P.I("v_mul_u32_u24", t(2), "10", t(1)); P.I("v_sub_u32", t(2), t(0), t(2)); P.I("v_lshlrev_b32", t(2), "4", t(2))
        P.I("v_mul_lo_u32", t(4), "s50", t(1)); P.I("v_add_u32", t(4), t(4), t(2)); P.I("v_add_u32", v(V_D + i), str(BIAS - (1024*i if i < 4 else 0)), t(4))
    P.I("v_lshrrev_b32", t(0), "4", L); P.I("v_bfe_u32", t(1), L, "2", "2"); P.I("v_and_b32", t(2), "3", L)
    P.I("v_lshlrev_b32", t(3), "2", t(0)); P.I("v_add_u32", t(3), t(3), t(1)); P.I("s_mov_b32", "s51", "160"); P.I("v_mul_lo_u32", t(4), "s51", t(3))
    P.I("v_lshlrev_b32", t(5), "3", t(2)); P.I("v_add_u32", t(4), t(4), t(5)); P.I("v_add_u32", v(V_T), s(S_WB), t(4))
    P.I("s_mul_i32", s(S_OW), s(S_W), str(384*1280)); P.I("s_mul_i32", "s51", "s47", "160"); P.I("s_add_u32", s(S_OW), s(S_OW), "s51")
    P.I("s_mul_i32", s(S_OH), "s46", str(48*4096)); P.I("s_mul_i32", "s51", s(S_W), str(12*4096)); P.I("s_add_u32", s(S_OH), s(S_OH), "s51")

def gen_k6(prof=False):
    pf = Prof(prof)
    P = Prog(); kernel_header(P, NAME); prologue(P)
    wd, bl, rd = {}, {}, {}
    pre = pf.stamp()
    def put(g):
        o = []
        for x in g:
            o.append(x)
            if x.defs[:1] == ["m0"]: o.append(Ins("s_nop", ["0"]))
        return o
    for ks in range(LS):
        g = w_dma(ks); wd[ks] = [x for x in g if x.kind == "vmem"]; pre += put(g)
        if ks < DB: b = b_loads(ks); bl[ks] = b[:4]; pre += b
    def reads(F):
        ks, T = divmod(F, 5); r = [tr_read(F, ks, T, u) for u in range(2)]; rd[F] = r; return r
    pre += [Wait(vm=wd[0] + wd[1] + bl[0])]
    for F in range(D): pre += reads(F)
    body = []
    for ks in range(12):
        n = 20
        sc = {g: [] for g in range(n)}; ve = {g: [] for g in range(n)}
        need = list(bl[ks]) + (list(wd[ks+1]) if ks + 1 < 12 else []) + (list(wd[ks+2]) if False else [])
        head = [Wait(vm=need)]
        for p in range(5):
            F = ks*5 + p + D
            if F < 60: r = reads(F); ve[4*p] += r
        for p in range(5):
            F = ks*5 + p; w = Wait(lgkm=rd[F])
            if p == 0: head.append(w)
            else: sc[4*p - 1].append(w)
        if ks + LS < 12:
            g = w_dma(ks + LS); wd[ks + LS] = [x for x in g if x.kind == "vmem"]
            sc[1].append(g[0]); ve[2].append(g[1]); ve[3].append(g[2]); ve[5].append(g[3]); ve[6].append(g[4]); sc[8].append(g[5]); ve[9].append(g[6]); sc[10].append(g[7])
        if ks + DB < 12:
            b = b_loads(ks + DB); bl[ks + DB] = b[:4]
            for G, gp in enumerate((11, 13, 14, 17)): ve[gp].append(b[G])
            sc[18].append(b[4])
        body += head
        for g in range(n):
            T, G = divmod(g, 4); c = a(ACC(T, G), 4)
            body.append(Ins(MF, [c, a(FBUF(ks*5 + T), 4), a(BBUF(ks, G), 4), c if ks > 0 else "0"]))
            body += sc[g] + ve[g]
    ep = pf.stamp()
    ep += [Ins("s_lshl_b32", ["s48", "s46", "2"]), Ins("s_add_u32", ["s48", "s48", s(S_W)]), Ins("s_mul_i32", ["s49", "s48", "20480"])]
    ep += [Ins("s_lshr_b32", ["s50", "s47", "1"]), Ins("s_mul_i32", ["s50", "s50", "5120"]), Ins("s_add_u32", ["s49", "s49", "s50"]), Ins("s_and_b32", ["s51", "s47", "1"])]
    xl = []
    for T in range(5):
        e = (T >> 1)*1024 + (T & 1)*8; o = ((5+T) >> 1)*1024 + ((5+T) & 1)*8
        ep += [Ins("s_mov_b32", ["s58", str(o)]), Ins("s_cmp_eq_u32", ["s51", "0"]), Ins("s_cselect_b32", ["s52", str(e), "s58"]), Ins("s_add_u32", ["s52", "s52", "s49"])]
        x = Ins("buffer_load_dwordx2", [v(40 + 2*T, 2), v(V_L16), s(S_X1, 4), "s52"], "offen"); xl.append(x); ep.append(x)
    ep += [Ins("v_lshrrev_b32", ["v22", "4", "v2"]), Ins("v_lshlrev_b32", ["v22", "4", "v22"]), Ins("s_mul_i32", ["s53", "s47", "320"]), Ins("s_add_u32", ["s53", "s53", str(3200*4)])]
    gl = []
    for p in range(4):
        for T in range(5):
            x = Ins("buffer_load_dwordx4", [v(60 + (p*5+T)*4, 4), "v22", s(S_MOD, 4), "s53"], f"offen offset:{T*64}"); gl.append(x); ep.append(x)
        if p < 3: ep.append(Ins("s_add_u32", ["s53", "s53", str(3840*4)]))
    ep += [Ins("s_nop", ["7"]), Wait(lgkm="all"), Ins("s_barrier")]
    ep += [Ins("s_mul_i32", ["s54", s(S_W), str(20*1024)]), Ins("v_add_u32", ["v23", "s54", v(V_L16)])]
    for G in range(4):
        for T in range(5): ep.append(Ins("ds_write_b128", ["v23", a(ACC(T, G), 4)], f"offset:{(G*5+T)*1024}"))
    ep += [Wait(lgkm="all"), Ins("s_barrier")]
    ep += [Ins("s_mul_i32", ["s54", s(S_W), str(5*1024)]), Ins("v_add_u32", ["v23", "s54", v(V_L16)])]
    rr = []
    for wv in range(4):
        for T in range(5):
            base = "v23" if wv < 3 else "v24"
            if wv == 3 and T == 0: ep.append(Ins("v_add_u32", ["v24", str(3*20480), "v23"]))
            ep.append(Ins("ds_read_b128", [v(140 + (wv*5+T)*4, 4), base], f"offset:{(wv % 3)*20480*(1 if wv < 3 else 0) + T*1024}"))
    ep.append(Wait(lgkm="all", vm="all"))
    ep += [Ins("v_and_b32", ["v25", "15", "v2"]), Ins("s_mov_b32", ["s55", "1280"]), Ins("v_mul_lo_u32", ["v25", "s55", "v25"]),
           Ins("v_lshrrev_b32", ["v26", "4", "v2"]), Ins("v_lshlrev_b32", ["v26", "3", "v26"]), Ins("v_add_u32", ["v25", "v25", "v26"]),
           Ins("s_mul_i32", ["s56", "s48", str(16*1280)]), Ins("s_mul_i32", ["s57", "s47", "160"]), Ins("s_add_u32", ["s56", "s56", "s57"])]
    for T in range(5):
        for r in range(4):
            A_ = [v(140 + (wv*5+T)*4 + r) for wv in range(4)]; Gb = [v(60 + (p*5+T)*4 + r) for p in range(4)]
            ep += [Ins("v_add_f32", [A_[0], A_[0], A_[1]]), Ins("v_add_f32", [A_[2], A_[2], A_[3]]), Ins("v_add_f32", [A_[0], A_[0], A_[2]]),
                   Ins("v_add_f32", [Gb[0], Gb[0], Gb[1]]), Ins("v_add_f32", [Gb[2], Gb[2], Gb[3]]), Ins("v_add_f32", [Gb[0], Gb[0], Gb[2]]),
                   Ins("v_cvt_pk_bf16_f32", [Gb[0], Gb[0], Gb[0]]), Ins("v_lshlrev_b32", [Gb[0], "16", Gb[0]])]
        ep += [Ins("v_lshlrev_b32", ["v30", "16", v(40+2*T)]), Ins("v_and_b32", ["v31", "0xffff0000", v(40+2*T)]),
               Ins("v_lshlrev_b32", ["v32", "16", v(41+2*T)]), Ins("v_and_b32", ["v33", "0xffff0000", v(41+2*T)])]
        for r in range(4): ep.append(Ins("v_fma_f32", [v(30+r), v(140 + T*4 + r), v(60 + T*4 + r), v(30+r)]))
        ep += [Ins("v_cvt_pk_bf16_f32", [v(34 + 2*(T % 2)), "v30", "v31"]), Ins("v_cvt_pk_bf16_f32", [v(35 + 2*(T % 2)), "v32", "v33"]),
               Ins("buffer_store_dwordx2", [v(34 + 2*(T % 2), 2), "v25", s(S_OUT, 4), "s56"], f"offen offset:{T*32}")]
    ep += pf.stamp() + pf.store(42, 6, 24)
    lin = P.ins + pre + body + ep
    resolve_waits(lin)
    P.add(pre + body + ep)
    finish(P, NAME)
    return P, dict(vgpr=224, agpr=208, lds=4*WREG, grid=256, block=256, linear=lin)
```

```python
from common import *
import math
LOG2E = 1.4426950408889634
QSCALE = LOG2E / math.sqrt(192.0)
import struct
def f2u(x): return hex(struct.unpack("<I", struct.pack("<f", x))[0])

def gen_k0(name="k0_kernel"):
    P = Prog(); kernel_header(P, name); guard(P, 240, name)
    load_ptrs(P, [(4, "c"), (6, "wmod"), (8, "ws")])
    srd_from_arg(P, 12, 4, 1280); srd_from_arg(P, 16, 6, 640*7680); srd_from_arg(P, 20, 8, SZ_MOD, WS_MOD)
    P.I("v_lshrrev_b32", "v1", "6", "v0"); P.I("v_and_b32", "v2", "63", "v0"); P.I("v_readfirstlane_b32", "s24", "v1")
    P.I("v_lshrrev_b32", "v3", "4", "v2"); P.I("v_and_b32", "v4", "15", "v2")
    P.I("s_lshr_b32", "s25", "s2", "2"); P.I("s_and_b32", "s26", "s2", "3")
    P.I("s_mul_i32", "s27", "s26", "160"); P.I("s_mul_i32", "s28", "s24", "40"); P.I("s_add_u32", "s27", "s27", "s28")
    P.I("v_lshlrev_b32", "v5", "1", "v3"); P.I("s_lshl_b32", "s28", "s27", "1")
    cl = [P.I("buffer_load_ushort", v(10+i), "v5", "s[12:15]", "s28", mods=f"offen offset:{i*8}") for i in range(10)]
    P.I("s_mov_b32", "s30", "7680"); P.I("v_mul_lo_u32", "v6", "s30", "v3"); P.I("v_lshlrev_b32", "v7", "3", "v4"); P.I("v_add_u32", "v6", "v6", "v7")
    P.I("s_mul_i32", "s29", "s27", "7680"); P.I("s_lshl_b32", "s31", "s25", "7"); P.I("s_add_u32", "s29", "s29", "s31")
    wl = []
    for i in range(10):
        wl.append(P.I("buffer_load_dwordx2", v(20+2*i, 2), "v6", "s[16:19]", "s29", mods="offen"))
        if i < 9: P.I("s_add_u32", "s29", "s29", str(4*7680))
    P.wait(vm=cl)
    P.I("s_mov_b32", "s32", f2u(-LOG2E))
    for i in range(10): P.I("v_lshlrev_b32", v(10+i), "16", v(10+i))
    for i in range(10): P.I("v_mul_f32", v(40+i), "s32", v(10+i))
    for i in range(10): P.I("v_exp_f32", v(40+i), v(40+i))
    P.nop(1)
    for i in range(10): P.I("v_add_f32", v(40+i), "1.0", v(40+i))
    for i in range(10): P.I("v_rcp_f32", v(40+i), v(40+i))
    P.nop(1)
    for i in range(10): P.I("v_mul_f32", v(10+i), v(10+i), v(40+i))
    for i in range(10): round_bf16(P, v(10+i), v(10+i))
    for r in range(4): P.I("v_mov_b32", v(50+r), "0")
    for i in range(10):
        P.wait(vm=[wl[i]])
        lo, hi = 20+2*i, 21+2*i
        P.I("v_lshlrev_b32", "v56", "16", v(lo)); P.I("v_and_b32", "v57", "0xffff0000", v(lo))
        P.I("v_lshlrev_b32", "v58", "16", v(hi)); P.I("v_and_b32", "v59", "0xffff0000", v(hi))
        for r in range(4): P.I("v_fmac_f32", v(50+r), v(10+i), v(56+r))
    for r in range(4): red_g(P, v(50+r), "v60")
    P.I("s_lshl_b32", "s33", "s24", "8"); P.I("v_lshlrev_b32", "v61", "4", "v4"); P.I("v_add_u32", "v61", "s33", "v61")
    w = P.I("ds_write_b128", "v61", v(50, 4))
    P.wait(lgkm="all"); P.I("s_barrier")
    P.I("s_cmp_lg_u32", "s24", "0"); P.I("s_cbranch_scc1", f"L_end_{name}")
    P.I("v_lshlrev_b32", "v61", "2", "v2")
    for j in range(4): P.I("ds_read_b32", v(50+j), "v61", mods=f"offset:{j*256}")
    P.wait(lgkm="all")
    P.I("v_add_f32", "v50", "v50", "v51"); P.I("v_add_f32", "v52", "v52", "v53"); P.I("v_add_f32", "v50", "v50", "v52")
    P.I("s_mul_i32", "s34", "s26", str(3840*4)); P.I("s_lshl_b32", "s35", "s25", "8"); P.I("s_add_u32", "s34", "s34", "s35")
    P.I("buffer_store_dword", "v50", "v61", "s[20:23]", "s34", mods="offen")
    finish(P, name)
    return P, dict(vgpr=64, lds=1024, grid=240, block=256)

def load_mod_vec(P, srd, lane40_off, soff, dst, col0_s, ldsaddr_v, lds_off, plus1=False, tmp=64):
    ls = []
    for p in range(4):
        ls.append(P.I("buffer_load_dwordx4", v(tmp+4*p, 4), lane40_off, srd, soff, mods="offen"))
        if p < 3: P.I("s_add_u32", soff, soff, str(3840*4))
    return ls
def finish_mod_vec(P, ls, tmp, plus1, ldsaddr_v, lds_off):
    P.wait(vm=ls)
    for r in range(4):
        P.I("v_add_f32", v(tmp+r), v(tmp+r), v(tmp+4+r)); P.I("v_add_f32", v(tmp+8+r), v(tmp+8+r), v(tmp+12+r))
    for r in range(4): P.I("v_add_f32", v(tmp+r), v(tmp+r), v(tmp+8+r))
    for r in range(4): round_bf16(P, v(tmp+r), v(tmp+r))
    if plus1:
        for r in range(4): P.I("v_add_f32", v(tmp+r), "1.0", v(tmp+r))
        for r in range(4): round_bf16(P, v(tmp+r), v(tmp+r))
    P.I("ds_write_b128", ldsaddr_v, v(tmp, 4), mods=f"offset:{lds_off}")

def ln_stats(P, X, n, wave_s, q_v, red_lds, tmp, name):
    m, r, t, t2 = v(tmp), v(tmp+1), v(tmp+2), v(tmp+3)
    P.I("v_add_f32", m, X[0], X[1])
    for x in X[2:]: P.I("v_add_f32", m, m, x)
    red_g(P, m, t)
    P.I("s_lshl_b32", "s40", wave_s, "6"); P.I("v_add_u32", t2, "s40", q_v)
    P.I("ds_write_b32", t2, m, mods=f"offset:{red_lds}")
    P.wait(lgkm="all"); P.I("s_barrier")
    for j in range(4): P.I("ds_read_b32", v(tmp+4+j), q_v, mods=f"offset:{red_lds + j*64}")
    P.wait(lgkm="all")
    P.I("v_add_f32", m, v(tmp+4), v(tmp+5)); P.I("v_add_f32", t, v(tmp+6), v(tmp+7)); P.I("v_add_f32", m, m, t)
    P.I("s_mov_b32", "s41", f2u(1.0/640)); P.I("v_mul_f32", m, "s41", m)
    for x in X: P.I("v_sub_f32", x, x, m)
    P.I("v_mul_f32", r, X[0], X[0])
    for x in X[1:]: P.I("v_fmac_f32", r, x, x)
    red_g(P, r, t)
    P.I("ds_write_b32", t2, r, mods=f"offset:{red_lds + 256}")
    P.wait(lgkm="all"); P.I("s_barrier")
    for j in range(4): P.I("ds_read_b32", v(tmp+4+j), q_v, mods=f"offset:{red_lds + 256 + j*64}")
    P.wait(lgkm="all")
    P.I("v_add_f32", r, v(tmp+4), v(tmp+5)); P.I("v_add_f32", t, v(tmp+6), v(tmp+7)); P.I("v_add_f32", r, r, t)
    P.I("s_mov_b32", "s42", f2u(1e-5)); P.I("v_mov_b32", t, "s42"); P.I("v_fmac_f32", t, "s41", r)
    P.I("v_rsq_f32", r, t); P.nop(1)

def gen_k1(name="k1_kernel"):
    P = Prog(); kernel_header(P, name); guard(P, 128, name)
    load_ptrs(P, [(4, "x"), (8, "ws")])
    srd_from_arg(P, 12, 4, 2048*1280); srd_from_arg(P, 16, 8, SZ_MOD, WS_MOD); srd_from_arg(P, 20, 8, SZ_H1, WS_H1)
    P.I("v_lshrrev_b32", "v1", "6", "v0"); P.I("v_and_b32", "v2", "63", "v0"); P.I("v_readfirstlane_b32", "s24", "v1")
    P.I("v_and_b32", "v3", "15", "v2"); P.I("v_lshrrev_b32", "v4", "4", "v2")
    P.I("s_mov_b32", "s30", "1280"); P.I("v_mul_lo_u32", "v5", "s30", "v3"); P.I("v_lshlrev_b32", "v6", "3", "v4"); P.I("v_add_u32", "v5", "v5", "v6")
    P.I("s_mul_i32", "s25", "s2", str(16*1280)); P.I("s_mul_i32", "s26", "s24", "320"); P.I("s_add_u32", "s25", "s25", "s26")
    xl = [P.I("buffer_load_dwordx2", v(100+2*j, 2), "v5", "s[12:15]", "s25", mods=f"offen offset:{(j//2)*64 + (j%2)*32}") for j in range(10)]
    P.I("v_min_u32", "v7", "39", "v2"); P.I("v_lshlrev_b32", "v7", "4", "v7")
    P.I("s_mul_i32", "s27", "s24", "640")
    P.I("s_add_u32", "s28", "s27", str(640*4))
    la = load_mod_vec(P, "s[16:19]", "v7", "s27", None, None, None, None, tmp=64)
    lb = load_mod_vec(P, "s[16:19]", "v7", "s28", None, None, None, None, tmp=80)
    P.I("s_mul_i32", "s29", "s24", "1280"); P.I("v_add_u32", "v8", "s29", "v7")
    finish_mod_vec(P, la, 64, False, "v8", 0)
    finish_mod_vec(P, lb, 80, True, "v8", 640)
    P.wait(vm=xl)
    X = [v(20+i) for i in range(40)]
    for j in range(10):
        for h in range(2):
            P.I("v_lshlrev_b32", v(20+4*j+2*h), "16", v(100+2*j+h)); P.I("v_and_b32", v(20+4*j+2*h+1), "0xffff0000", v(100+2*j+h))
    P.I("v_lshlrev_b32", "v9", "2", "v3")
    ln_stats(P, X, 40, "s24", "v9", 5120, 10, name)
    P.I("v_lshlrev_b32", "v8", "4", "v4"); P.I("v_add_u32", "v8", "s29", "v8")
    P.I("s_mov_b32", "s43", f2u(QSCALE)); P.I("v_mul_f32", "v11", "s43", "v11")
    P.I("s_mul_i32", "s31", "s2", "0");
    P.I("s_lshr_b32", "s32", "s2", "2"); P.I("s_mul_i32", "s32", "s32", "81920"); P.I("s_and_b32", "s33", "s2", "3"); P.I("s_lshl_b32", "s33", "s33", "10")
    P.I("s_add_u32", "s32", "s32", "s33"); P.I("s_mul_i32", "s33", "s24", str(5*4096)); P.I("s_add_u32", "s32", "s32", "s33")
    P.I("v_lshlrev_b32", "v12", "4", "v2")
    for i in range(5):
        rd = []
        for u in range(2):
            j = 2*i+u
            rd.append(P.I("ds_read_b128", v(64+8*u, 4), "v8", mods=f"offset:{(32*i+16*u)*4}"))
            rd.append(P.I("ds_read_b128", v(68+8*u, 4), "v8", mods=f"offset:{640+(32*i+16*u)*4}"))
        P.wait(lgkm="all")
        for u in range(2):
            j = 2*i+u
            for r in range(4):
                x = v(20+4*j+r)
                P.I("v_mul_f32", x, x, v(68+8*u+r))
                P.I("v_mul_f32", v(64+8*u+r), "s43", v(64+8*u+r))
                P.I("v_fma_f32", x, x, "v11", v(64+8*u+r))
            P.I("v_cvt_pk_bf16_f32", v(80+2*u), v(20+4*j), v(20+4*j+1)); P.I("v_cvt_pk_bf16_f32", v(81+2*u), v(20+4*j+2), v(20+4*j+3))
        P.I("buffer_store_dwordx4", v(80, 4), "v12", "s[20:23]", "s32", mods="offen")
        if i < 4: P.I("s_add_u32", "s32", "s32", "4096"); P.nop(2)
    finish(P, name)
    return P, dict(vgpr=128, lds=6144, grid=128, block=256)

def gen_k4(name="k4_kernel", fp32=True):
    P = Prog(); kernel_header(P, name); guard(P, 128, name)
    load_ptrs(P, [(4, "x"), (8, "ws")])
    srd_from_arg(P, 12, 4, 2048*1280); srd_from_arg(P, 16, 8, SZ_MOD, WS_MOD); srd_from_arg(P, 20, 8, SZ_H2, WS_H2)
    srd_from_arg(P, 44, 8, SZ_PART, WS_PART); srd_from_arg(P, 48, 8, SZ_X1, WS_X1)
    P.I("v_lshrrev_b32", "v1", "6", "v0"); P.I("v_and_b32", "v2", "63", "v0"); P.I("v_readfirstlane_b32", "s24", "v1")
    P.I("v_and_b32", "v3", "15", "v2"); P.I("v_lshrrev_b32", "v4", "4", "v2")
    P.I("v_lshlrev_b32", "v18", "4", "v2")
    per = 10240 if fp32 else 5120
    P.I("s_mul_i32", "s52", "s2", str(4*per)); P.I("s_mul_i32", "s53", "s24", str(per)); P.I("s_add_u32", "s52", "s52", "s53")
    pl = {}
    nld = 10 if fp32 else 5
    for kq in range(4):
        for T in range(nld):
            if T % 4 == 0 and T > 0: P.I("s_add_u32", "s52", "s52", "4096")
            pl[(kq, T)] = P.I("buffer_load_dwordx4", v(96 + (kq*nld + T)*4, 4), "v18", "s[44:47]", "s52", mods=f"offen offset:{(T % 4)*1024}")
        if kq < 3: P.I("s_add_u32", "s52", "s52", str(128*4*per - (8192 if fp32 else 4096)))
    P.I("s_mov_b32", "s30", "1280"); P.I("v_mul_lo_u32", "v5", "s30", "v3"); P.I("v_lshlrev_b32", "v6", "3", "v4"); P.I("v_add_u32", "v5", "v5", "v6")
    P.I("s_mul_i32", "s25", "s2", str(16*1280)); P.I("s_mul_i32", "s26", "s24", "320"); P.I("s_add_u32", "s25", "s25", "s26")
    xl = [P.I("buffer_load_dwordx2", v(70+2*j, 2), "v5", "s[12:15]", "s25", mods=f"offen offset:{j*32}") for j in range(10)]
    P.I("v_min_u32", "v7", "39", "v2"); P.I("v_lshlrev_b32", "v7", "4", "v7")
    P.I("s_mul_i32", "s27", "s24", "640"); P.I("s_mul_i32", "s29", "s24", "1920"); P.I("v_add_u32", "v8", "s29", "v7")
    tmp = 20
    for n, (col, plus1) in enumerate(((1280, False), (1920, False), (2560, True))):
        P.I("s_add_u32", "s28", "s27", str(col*4))
        l = load_mod_vec(P, "s[16:19]", "v7", "s28", None, None, None, None, tmp=tmp)
        finish_mod_vec(P, l, tmp, plus1, "v8", 640*n)
    P.wait(vm=list(pl.values()) + xl)
    X = [v(20+i) for i in range(40)]
    if fp32:
        for T in range(10):
            for r in range(4):
                b = lambda kq: v(96 + (kq*10 + T)*4 + r)
                P.I("v_add_f32", b(0), b(0), b(1)); P.I("v_add_f32", b(2), b(2), b(3)); P.I("v_add_f32", X[4*T+r], b(0), b(2))
    else:
        for Tp in range(5):
            for h in range(4):
                i0 = 4*(2*Tp + h//2) + 2*(h % 2)
                for kq in range(4):
                    src = v(96 + (kq*5 + Tp)*4 + h)
                    if kq == 0:
                        P.I("v_lshlrev_b32", X[i0], "16", src); P.I("v_and_b32", X[i0+1], "0xffff0000", src)
                    else:
                        P.I("v_lshlrev_b32", "v60", "16", src); P.I("v_and_b32", "v61", "0xffff0000", src)
                        P.I("v_add_f32", X[i0], X[i0], "v60"); P.I("v_add_f32", X[i0+1], X[i0+1], "v61")
    P.I("v_lshlrev_b32", "v8", "4", "v4"); P.I("v_add_u32", "v8", "s29", "v8")
    P.wait(lgkm="all")
    ga = [P.I("ds_read_b128", v(96+4*T, 4), "v8", mods=f"offset:{64*T}") for T in range(10)]
    P.wait(lgkm="all")
    for T in range(10):
        P.I("v_lshlrev_b32", "v60", "16", v(70+2*T)); P.I("v_and_b32", "v61", "0xffff0000", v(70+2*T))
        P.I("v_lshlrev_b32", "v62", "16", v(71+2*T)); P.I("v_and_b32", "v63", "0xffff0000", v(71+2*T))
        for r in range(4): P.I("v_fma_f32", X[4*T+r], X[4*T+r], v(96+4*T+r), v(60+r))
    P.I("s_mul_i32", "s52", "s2", str(4*5120)); P.I("s_mul_i32", "s53", "s24", "5120"); P.I("s_add_u32", "s52", "s52", "s53")
    for Tp in range(5):
        b = 140 + 4*Tp
        for h in range(4):
            i0 = 4*(2*Tp + h//2) + 2*(h % 2)
            P.I("v_cvt_pk_bf16_f32", v(b+h), X[i0], X[i0+1])
        if Tp == 4: P.I("s_add_u32", "s52", "s52", "4096")
        P.I("buffer_store_dwordx4", v(b, 4), "v18", "s[48:51]", "s52", mods=f"offen offset:{(Tp % 4)*1024}")
        for h in range(4):
            i0 = 4*(2*Tp + h//2) + 2*(h % 2)
            P.I("v_lshlrev_b32", X[i0], "16", v(b+h)); P.I("v_and_b32", X[i0+1], "0xffff0000", v(b+h))
    P.I("v_lshlrev_b32", "v9", "2", "v3")
    ln_stats(P, X, 40, "s24", "v9", 7680, 10, name)
    P.I("s_lshr_b32", "s32", "s2", "2"); P.I("s_mul_i32", "s32", "s32", "81920"); P.I("s_and_b32", "s33", "s2", "3"); P.I("s_lshl_b32", "s33", "s33", "10")
    P.I("s_add_u32", "s32", "s32", "s33"); P.I("s_mul_i32", "s33", "s24", str(5*4096)); P.I("s_add_u32", "s32", "s32", "s33")
    sbr = [P.I("ds_read_b128", v(64+4*T, 4), "v8", mods=f"offset:{640 + 64*T}") for T in range(10)]
    cbr = [P.I("ds_read_b128", v(104+4*T, 4), "v8", mods=f"offset:{1280 + 64*T}") for T in range(10)]
    P.wait(lgkm="all")
    for i in range(5):
        b = 160 + 4*(i % 2)
        for u in range(2):
            T = 2*i+u
            for r in range(4):
                x = X[4*T+r]
                P.I("v_mul_f32", x, x, v(104+4*T+r)); P.I("v_fma_f32", x, x, "v11", v(64+4*T+r))
            P.I("v_cvt_pk_bf16_f32", v(b+2*u), X[4*T], X[4*T+1]); P.I("v_cvt_pk_bf16_f32", v(b+2*u+1), X[4*T+2], X[4*T+3])
        P.I("buffer_store_dwordx4", v(b, 4), "v18", "s[20:23]", "s32", mods="offen")
        if i < 4: P.I("s_add_u32", "s32", "s32", "4096")
    finish(P, name)
    return P, dict(vgpr=256, lds=8192+512, grid=128, block=256)
```

```python
import sys, importlib
from common import *
import k_small, k2, k3, k5, k6
OUT = "adaLN_cond__sliding_block_cached__glu_gated_reglu__prompt.s"
HEAD = open("adaLN_cond__sliding_block_cached__glu_gated_reglu__prompt.s.ref").read().split("; Override launch")[0]

def emit(kernels, path=OUT, do_check=True):
    L = [HEAD.rstrip("\n")]
    for n, P, info in kernels:
        L.append(f"; @launch kernel={n} grid=({info['grid']},1,1) block=({info['block']},1,1) lds={info['lds']}")
    L.append('.amdgcn_target "amdgcn-amd-amdhsa--gfx950"'); L.append(".text")
    seen = set(); nerr = 0
    for n, P, info in kernels:
        if n in seen: continue
        seen.add(n)
        lin = info.get("linear")
        if lin is None:
            resolve_waits(P.ins); lin = P.ins
        if do_check: nerr += len(check(lin, n))
        L += [str(i) if i.kind in ("label", "raw") else "  " + str(i) for i in P.ins]
    seen = set()
    for n, P, info in kernels:
        if n in seen: continue
        seen.add(n)
        L.append(kernel_desc(n, info["vgpr"], info.get("agpr", 0), info.get("sgpr", 96)))
    open(path, "w").write("\n".join(L) + "\n")
    return nerr

if __name__ == "__main__":
    PROF = "--prof" in sys.argv
    ks = []
    P, info = k_small.gen_k0(); ks.append(("k0_kernel", P, info))
    P, info = k_small.gen_k1(); ks.append(("k1_kernel", P, info))
    P, info = k2.gen_k2(prof=PROF); ks.append(("k2_kernel", P, info))
    FP32 = "--bf16part" not in sys.argv
    P, info = k3.gen_k3(prof=PROF, fp32=FP32); ks.append(("k3_kernel", P, info))
    P, info = k_small.gen_k4(fp32=FP32); ks.append(("k4_kernel", P, info))
    P, info = k5.gen_k5(prof=PROF); ks.append(("k5_kernel", P, info))
    P, info = k6.gen_k6(prof=PROF); ks.append(("k6_kernel", P, info))
    print("hazards:", emit(ks))
```
